```python
import torch

def _softmax(x, axis=-1):
    return torch.softmax(x, dim=axis)

def _gelu(x):
    return torch.nn.functional.gelu(x, approximate='tanh')

def _silu(x):
    return torch.nn.functional.silu(x)

def _sigmoid(x):
    return torch.sigmoid(x)

def _layernorm(x, axis=-1, eps=1e-05):
    m = x.mean(dim=axis, keepdim=True)
    v = x.var(dim=axis, keepdim=True, unbiased=False)
    return (x - m) / torch.sqrt(v + eps)

def _scatter_add(tgt, idx, src, axis=0):
    return tgt.clone().index_add_(axis, idx, src)

def _segment_sum(src, seg, n):
    out = torch.zeros((n,) + src.shape[1:], dtype=src.dtype)
    return out.index_add_(0, seg, src)

def _pad(x, pw):
    flat = tuple((v for pair in reversed(pw) for v in pair))
    return torch.nn.functional.pad(x, flat)
kernel_name = 'adaLN_cond__ssm_conv_s4__dense_activation_silu__prompt'

def setup_inputs():

    _w = lambda a: (lambda t: t.to(torch.bfloat16) if t.is_floating_point() else t)(torch.as_tensor(a))

    def _A_setup():
        B, L, D, N = (1, 2048, 448, 256)
        A_re = -(lambda _x: torch.exp(torch.as_tensor(_x)))((lambda *s: torch.randn(*s, dtype=torch.bfloat16) * 3.2)(D, N))
        A_im = torch.pi * (lambda *s: torch.randn(*s, dtype=torch.bfloat16) * 0.05)(D, N)
        B_re = (lambda *s: torch.randn(*s, dtype=torch.bfloat16) * 0.1)(D, N)
        B_im = (lambda *s: torch.randn(*s, dtype=torch.bfloat16) * 0.1)(D, N)
        C_re = (lambda *s: torch.randn(*s, dtype=torch.bfloat16) * 0.1)(D, N)
        C_im = (lambda *s: torch.randn(*s, dtype=torch.bfloat16) * 0.1)(D, N)
        log_dt = (lambda *s: torch.randn(*s, dtype=torch.bfloat16) * 0.05)(D) * 0.5 - 4.0
        Dskip = (lambda *s: torch.randn(*s, dtype=torch.bfloat16) * 0.05)(D)
        return {'u': _w((lambda *s: torch.randn(*s, dtype=torch.bfloat16) * 0.05)(B, L, D)), 'A_re': _w(A_re), 'A_im': _w(A_im), 'B_re': _w(B_re), 'B_im': _w(B_im), 'C_re': _w(C_re), 'C_im': _w(C_im), 'log_dt': _w(log_dt), 'Dskip': _w(Dskip)}
    _A_in = _A_setup()

    def _B_setup():
        B, S, D, F = (1, 2048, 448, 1792)
        return {'x': _w((lambda *s: torch.randn(*s, dtype=torch.bfloat16) * 0.05)(B, S, D)), 'w1': _w((lambda *s: torch.randn(*s, dtype=torch.bfloat16) * 3.2)(D, F) * D ** (-0.5)), 'w2': _w((lambda *s: torch.randn(*s, dtype=torch.bfloat16) * 0.4)(F, D) * F ** (-0.5))}
    _B_in = _B_setup()
    return {'A_u': _A_in['u'], 'A_A_re': _A_in['A_re'], 'A_A_im': _A_in['A_im'], 'A_B_re': _A_in['B_re'], 'A_B_im': _A_in['B_im'], 'A_C_re': _A_in['C_re'], 'A_C_im': _A_in['C_im'], 'A_log_dt': _A_in['log_dt'], 'A_Dskip': _A_in['Dskip'], 'B_x': _B_in['x'], 'B_w1': _B_in['w1'], 'B_w2': _B_in['w2'], 'c': _w((lambda *s: torch.randn(*s, dtype=torch.bfloat16) * 0.2)(1, 448) * 8.0), 'w_mod': _w((lambda *s: torch.randn(*s, dtype=torch.bfloat16) * 0.2)(448, 6 * 448) * 448 ** (-0.5) * 8.0)}

def reference(A_u, A_A_re, A_A_im, A_B_re, A_B_im, A_C_re, A_C_im, A_log_dt, A_Dskip, B_x, B_w1, B_w2, c, w_mod):

    def _A_ref(u, A_re, A_im, B_re, B_im, C_re, C_im, log_dt, Dskip):
        Bsz, L, D = u.shape
        dt = torch.exp(log_dt)[:, None]
        A = A_re + 1j * A_im
        Bc = B_re + 1j * B_im
        Cc = C_re + 1j * C_im
        logdA = dt * A
        dB = dt * Bc
        l = (lambda x, dt: x.to(dt))(torch.arange(L), A_re.dtype)
        P = torch.exp(logdA[:, :, None] * l[None, None, :])
        K = torch.einsum('dn,dnl,dn->dl', Cc, P, dB).real
        L2 = 2 * L
        Kp = _pad(K, ((0, 0), (0, L)))
        up = (lambda x, *d: x.permute(*d))(u, 0, 2, 1)
        up = _pad(up, ((0, 0), (0, 0), (0, L)))
        Kf = (lambda x, axes=(-2, -1): torch.fft.rfft2(x.float(), dim=axes))(Kp[:, None, :], axes=(-2, -1))
        Uf = (lambda x, axes=(-2, -1): torch.fft.rfft2(x.float(), dim=axes))(up[:, :, None, :], axes=(-2, -1))
        Yf = Uf * Kf[None, :, :, :]
        y = (lambda x, s, axes=(-2, -1): torch.fft.irfft2(x, s=s, dim=axes).to(torch.bfloat16))(Yf, (1, L2), axes=(-2, -1))[:, :, 0, :L]
        y = (lambda x, *d: x.permute(*d))(y, 0, 2, 1) + u * Dskip[None, None, :]
        return y

    def _B_ref(x, w1, w2):
        h = torch.einsum('bsd,df->bsf', x, w1)
        h = _silu(h)
        out = torch.einsum('bsf,fd->bsd', h, w2)
        return out
    x = A_u
    mod = (_silu(c) @ w_mod).reshape(c.shape[0], 6, 1, -1)
    sa, ca, ga, sb, cb, gb = (mod[:, 0].clone(), mod[:, 1].clone(), mod[:, 2].clone(), mod[:, 3].clone(), mod[:, 4].clone(), mod[:, 5].clone())
    h = _layernorm(x, axis=-1) * (1 + ca) + sa
    x = x + ga * _A_ref(h, A_A_re, A_A_im, A_B_re, A_B_im, A_C_re, A_C_im, A_log_dt, A_Dskip)
    h = _layernorm(x, axis=-1) * (1 + cb) + sb
    x = x + gb * _B_ref(h, B_w1, B_w2)
    return x
```

```python
import re

REG_RE = re.compile(r'(?<![\w.])([vas])(\d+)(?![\w\]])|(?<![\w.])([vas])\[(\d+):(\d+)\]|\b(vcc|exec|m0|scc)\b')

def regs_of(op):
    out = set()
    for m in REG_RE.finditer(op):
        if m.group(1):
            out.add(m.group(1) + m.group(2))
        elif m.group(3):
            for i in range(int(m.group(4)), int(m.group(5)) + 1):
                out.add(m.group(3) + str(i))
        else:
            out.add(m.group(6))
    return out

def split_ops(s):
    ops, depth, cur = [], 0, ''
    for ch in s:
        if ch == '[': depth += 1
        if ch == ']': depth -= 1
        if ch == ',' and depth == 0:
            ops.append(cur.strip()); cur = ''
        else:
            cur += ch
    if cur.strip(): ops.append(cur.strip())
    return ops

TRANS = ('v_exp_f32', 'v_log_f32', 'v_rcp_f32', 'v_rsq_f32', 'v_sqrt_f32', 'v_sin_f32', 'v_cos_f32')

class Ins:
    __slots__ = ('text', 'op', 'rd', 'wr', 'kind', 'passes', 'srcc', 'srcab', 'stdata', 'dpp', 'tag')
    def __init__(self, text, tag=None):
        self.text = text; self.tag = tag
        t = text.split(';')[0].strip()
        sp = t.split(None, 1)
        op = sp[0]; rest = sp[1] if len(sp) > 1 else ''
        self.op = op
        ops = split_ops(rest)
        self.rd = set(); self.wr = set(); self.kind = 'other'; self.passes = 0
        self.srcc = set(); self.srcab = set(); self.stdata = set(); self.dpp = False
        R = [regs_of(re.sub(r'(op_sel|op_sel_hi|neg_lo|neg_hi|quad_perm):\[[^\]]*\]', '', o)) for o in ops]
        def un(l):
            s = set()
            for x in l: s |= x
            return s
        if op.startswith('v_mfma'):
            self.kind = 'mfma'
            self.passes = 8 if '32x32' in op else 4
            self.wr = R[0]; self.srcab = R[1] | R[2]; self.srcc = R[3]; self.rd = self.srcab | self.srcc
        elif op.startswith('v_'):
            self.kind = 'valu'
            if op.startswith('v_cmp'):
                self.wr = R[0]; self.rd = un(R[1:])
                if op.startswith('v_cmpx'): self.wr |= {'exec'}
            elif op.startswith('v_permlane') and 'swap' in op:
                self.wr = R[0] | R[1]; self.rd = R[0] | R[1]
            elif op.startswith('v_readfirstlane') or op.startswith('v_readlane'):
                self.wr = R[0]; self.rd = un(R[1:])
            elif op.startswith('v_add_co') or op.startswith('v_addc_co') or op.startswith('v_sub_co'):
                self.wr = R[0] | R[1]; self.rd = un(R[2:])
            else:
                self.wr = R[0]; self.rd = un(R[1:])
                if op.startswith('v_fmac') or op.startswith('v_dot2c') or op.startswith('v_writelane') or '_dpp' in op:
                    self.rd |= R[0]
                if op.startswith('v_cndmask') and len(ops) == 3: self.rd |= {'vcc'}
            self.dpp = '_dpp' in op
        elif op.startswith('ds_'):
            self.kind = 'ds'
            if op.startswith('ds_read') or op.startswith('ds_bpermute') or op.startswith('ds_swizzle'):
                self.wr = R[0]; self.rd = un(R[1:])
            else:
                self.rd = un(R)
            if 'addtid' in op: self.rd |= {'m0'}
        elif op.startswith('global_') or op.startswith('buffer_'):
            self.kind = 'vm'
            islds = op.startswith('global_load_lds') or re.search(r'\blds\b', rest) is not None
            if islds:
                self.rd = un(R) | {'m0'}
            elif '_load' in op:
                self.wr = R[0]; self.rd = un(R[1:])
            elif '_store' in op:
                self.rd = un(R)
                if 'x4' in op or 'x3' in op:
                    self.stdata = R[1] if op.startswith('global_') else R[0]
            elif '_atomic' in op:
                self.rd = un(R)
                if 'sc0' in rest: self.wr = R[0]
            else:
                self.kind = 'vmother'
        elif op.startswith('s_load') or op.startswith('s_memtime') or op.startswith('s_memrealtime'):
            self.kind = 'smem'
            self.wr = R[0]; self.rd = un(R[1:])
        elif op.startswith('s_'):
            self.kind = 'salu'
            if op.startswith('s_cmp') or op.startswith('s_cbranch') or op in ('s_branch', 's_barrier', 's_waitcnt', 's_nop', 's_endpgm', 's_setprio', 's_sleep', 's_bitcmp1_b32', 's_bitcmp0_b32'):
                self.rd = un(R)
                if 'vcc' in op: self.rd |= {'vcc'}
                if 'exec' in op: self.rd |= {'exec'}
            else:
                self.wr = R[0]; self.rd = un(R[1:])
                if 'saveexec' in op: self.wr |= {'exec'}
                if op.startswith('s_add') and False: pass
        self.rd.discard('off');

class Asm:
    def __init__(self):
        self.out = []
        self.hist = []
        self.vmq = []
        self.lgq = []
        self.nops = 0
        self.lastw = {}
        self.count = 0
    def raw(self, s):
        self.out.append(s)
    def comment(self, s):
        self.out.append('  ; ' + s)
    def label(self, name, reset=True):
        self.out.append(name + ':')
    def state(self):
        return (list(self.hist), list(self.vmq), list(self.lgq))
    def set_state(self, st):
        self.hist, self.vmq, self.lgq = list(st[0]), list(st[1]), list(st[2])
    def _emit(self, text):
        self.out.append('  ' + text); self.count += 1
    def wait(self, vm=None, lgkm=None):
        parts = []
        if vm is not None:
            vm = min(vm, 62)
            if len(self.vmq) > vm:
                parts.append(f'vmcnt({vm})'); self.vmq = self.vmq[len(self.vmq) - vm:] if vm else []
        if lgkm is not None:
            lgkm = min(lgkm, 14)
            if any(k == 'smem' for _, k, _t in self.lgq): lgkm = 0 if len(self.lgq) > lgkm else lgkm
            if len(self.lgq) > lgkm:
                parts.append(f'lgkmcnt({lgkm})'); self.lgq = self.lgq[len(self.lgq) - lgkm:] if lgkm else []
        if parts:
            self._emit('s_waitcnt ' + ' '.join(parts)); self.hist.append(Ins('s_waitcnt 0'))
    def force_wait(self, vm=None, lgkm=None):
        parts = []
        if vm is not None:
            parts.append(f'vmcnt({vm})'); self.vmq = self.vmq[len(self.vmq) - vm:] if vm else []
        if lgkm is not None:
            parts.append(f'lgkmcnt({lgkm})'); self.lgq = self.lgq[len(self.lgq) - lgkm:] if lgkm else []
        self._emit('s_waitcnt ' + ' '.join(parts)); self.hist.append(Ins('s_waitcnt 0'))
    def wait_vm_tag(self, tag):
        idx = [i for i, (w, t) in enumerate(self.vmq) if t == tag]
        if idx: self.wait(vm=len(self.vmq) - 1 - idx[-1])
    def wait_lg_tag(self, tag):
        idx = [i for i, (w, k, t) in enumerate(self.lgq) if t == tag]
        if idx: self.wait(lgkm=len(self.lgq) - 1 - idx[-1])
    def barrier(self):
        self.wait(lgkm=0)
        self('s_barrier')
    def _need(self, ins):
        need = 0
        n = len(self.hist)
        for d in range(1, min(n, 24) + 1):
            p = self.hist[n - d]
            dist = d - 1
            if p is None: continue
            req = 0
            if p.kind == 'valu':
                vw = {r for r in p.wr if r[0] in 'va' and r not in ('vcc',)}
                sw = {r for r in p.wr if r[0] == 's' or r == 'vcc'}
                if ins.kind == 'mfma' and vw & ins.rd: req = max(req, 2)
                if ins.kind == 'valu':
                    if ins.dpp and vw & ins.rd: req = max(req, 2)
                    if ins.op.startswith('v_permlane') and vw & ins.rd: req = max(req, 2)
                    if (ins.op.startswith('v_readlane') or ins.op.startswith('v_readfirstlane')) and vw & ins.rd: req = max(req, 1)
                    if sw & ins.rd: req = max(req, 4 if (ins.op.startswith('v_readlane') or ins.op.startswith('v_writelane')) else 2)
                    if p.op in TRANS and vw & ins.rd and ins.op not in TRANS: req = max(req, 1)
                    if 'exec' in p.wr:
                        if ins.dpp: req = max(req, 5)
                        if ins.op.startswith('v_readlane') or ins.op.startswith('v_readfirstlane') or ins.op.startswith('v_permlane'): req = max(req, 4)
                if ins.kind == 'mfma' and 'exec' in p.wr: req = max(req, 4)
                if ins.kind == 'vm' and sw & ins.rd: req = max(req, 5)
                if ins.kind == 'salu' and sw & ins.rd: req = max(req, 1)
                if p.op in TRANS and ins.kind in ('ds', 'vm', 'mfma') and vw & ins.rd: req = max(req, 2)
            elif p.kind == 'mfma':
                big = 12 if p.passes == 8 else 8
                if ins.kind == 'mfma':
                    if p.wr & ins.srcab: req = max(req, big)
                    if p.wr & ins.srcc and not (p.wr == ins.srcc and p.passes == ins.passes): req = max(req, big - 2)
                    if p.wr & ins.wr and not (p.wr & ins.srcc): req = max(req, big)
                elif ins.kind in ('valu', 'ds', 'vm'):
                    if p.wr & (ins.rd | ins.wr): req = max(req, big)
                    if ins.kind == 'valu' and p.srcc & ins.wr: req = max(req, 7 if p.passes == 8 else 3)
            elif p.kind == 'salu':
                if 'm0' in p.wr and 'm0' in ins.rd and ins.kind in ('vm', 'ds'): req = max(req, 1)
            elif p.kind == 'vm':
                if p.stdata & ins.wr: req = max(req, 2)
            if req > dist: need = max(need, req - dist)
        return need
    def __call__(self, text, tag=None):
        for line in text.split('\n'):
            line = line.strip()
            if not line or line.startswith(';'): continue
            self._one(line, tag)
    def _one(self, text, tag):
        ins = Ins(text, tag)
        touch = ins.rd | ins.wr
        vm = None
        for i, (w, t) in enumerate(self.vmq):
            if w & touch: vm = len(self.vmq) - 1 - i
        lg = None
        for i, (w, k, t) in enumerate(self.lgq):
            if w & touch:
                lg = 0 if k == 'smem' else len(self.lgq) - 1 - i
        if lg is not None and any(k == 'smem' for _, k, _t in self.lgq): lg = 0
        if vm is not None or lg is not None: self.wait(vm=vm, lgkm=lg)
        need = self._need(ins)
        while need > 0:
            k = min(need, 16)
            self._emit(f's_nop {k-1}'); self.nops += k
            self.hist.extend([None] * k); need -= k
        if ins.kind in ('vm', 'ds'):
            ops = split_ops(text.split(None, 1)[1])
            if ins.kind == 'vm':
                isl = ins.op.startswith('global_load_lds') or ' lds' in text
                if ins.op.startswith('global_'): ad = ops[0] if (isl or '_store' in ins.op) else ops[1]
                else: ad = ops[0] if isl else ops[1]
            else:
                ad = ops[1] if ins.op.startswith('ds_read') else ops[0]
            for r in regs_of(ad.split()[0]):
                w = self.lastw.get(r)
                ok = ('v_add_u32', 'v_lshl_add_u32', 'v_mov_b32', 'v_min_u32', 'v_add3_u32', 'v_lshlrev_b32', 'v_mul_u32_u24', 'v_sub_u32', 'v_xor_b32', 'v_cndmask_b32')
                assert w in ok, f'address register {r} last written by {w} at: {text}'
        for r in ins.wr: self.lastw[r] = ins.op
        self._emit(text)
        self.hist.append(ins)
        if len(self.hist) > 64: self.hist = self.hist[-48:]
        if ins.kind == 'vm':
            self.vmq.append((set(ins.wr), tag))
            assert len(self.vmq) <= 63, 'vmcnt overflow at ' + text
        elif ins.kind == 'ds':
            self.lgq.append((set(ins.wr), 'ds', tag))
            if len(self.lgq) > 15: self.lgq = self.lgq[-15:] if False else self.lgq
        elif ins.kind == 'smem':
            self.lgq.append((set(ins.wr), 'smem', tag))
    def text(self):
        return '\n'.join(self.out) + '\n'
```

```python
import sys, argparse
from asmlib import Asm
KN = 'adaLN_cond__ssm_conv_s4__dense_activation_silu__prompt'

WS_EPOCH = 0
WS_STATS = 0x210000
WS_XT    = 0xA00000
WS_MODG  = 0x5000
WS_MODA  = 0x1000
WS_FLAG1 = 0x10000
WS_FLAG2 = 0x1E000
F2S = 0xE000
WS_PROF  = 0x220000
WS_X2T   = 0x40000
X2S = 4224; XTS = 8320
WS_H     = 0x280000

KG_ROW = 1040; KG_CH = 53 * KG_ROW
L_B    = 2 * KG_CH
L_T    = L_B; T_ROW = 72; T_CH = 32 * T_ROW
L_KC   = L_T + 2 * T_CH
KC_O = 4160; KC_CH = 8320
L_Y    = L_B; Y_W = 10240
L_UR   = L_B + 4 * Y_W; UR_CH = 4608
LDS_TOTAL = 163840
L_XT = 131584
SL = 24576
L_PC = 4 * SL
L_PS = L_PC + 3584
L_GB = L_PS + 2048
L_H2 = 106496
W2H = 12288
L_XS = L_H2 + 4 * W2H
L_RED = 0

S_AU, S_ARE, S_AIM, S_BRE, S_BIM, S_CRE, S_CIM, S_LDT = [16 + 2 * i for i in range(8)]
S_DSK, S_BX, S_W1, S_W2, S_C, S_WM, S_OUT, S_DBG = [32 + 2 * i for i in range(8)]
S_WS = 48
S_TAG, S_E, S_XCD, S_LOC, S_CW, S_TT, S_FT, S_W = 50, 51, 52, 53, 54, 55, 56, 57
S_LDTV, S_DSKV = 58, 59
SRD1, SRD2 = 60, 64
S_R0, S_CH, S_PAR = 4, 5, 3
def sp(i): return f's[{i}:{i+1}]'
V_T0, V_T1 = 240, 241
V_A0, V_A1 = 242, 243
V_X0, V_X1 = 244, 245
V_D1 = 246
V_D2 = 250

PROF = False
OPT = {}
STAMPS = []
def stamp(a, idx):
    if not PROF: return
    if OPT.get('early') and idx >= 8: return
    assert idx < 16 and idx not in STAMPS
    a(f's_memtime s[{68+2*idx}:{69+2*idx}]')
    STAMPS.append(idx)
def stamps_out(a):
    if not PROF: return
    if OPT.get('dbgout'):
        a(f's_memrealtime s[14:15]')
        a(f's_cmp_lg_u32 s2, {OPT["dbgout"]-1}')
        a(f's_cbranch_scc1 L_end')
        a(f's_cmp_lg_u32 s{S_W}, 0')
        a(f's_cbranch_scc1 L_end')
        a(f'v_mov_b32 v254, 0')
        a(f's_sub_u32 s14, s14, s12') if False else None
        for idx in sorted(STAMPS):
            if idx == 0: a(f's_sub_u32 s6, s14, s101')
            else: a(f's_sub_u32 s6, s{68+2*idx}, s68')
            a(f'v_mov_b32 v255, s6')
            a(f'global_store_dword v254, v255, {sp(S_DBG)} offset:{idx*4}')
        return
    a(f'v_mov_b32 v254, s100')
    for idx in STAMPS:
        a(f'v_mov_b32 v255, s{68+2*idx}')
        a(f'global_store_dword v254, v255, {sp(S_WS)} offset:{idx*4}')

def EST(a, k):
    if PROF and OPT.get('early'):
        a(f's_memtime s[{68+2*k}:{69+2*k}]')
        if k not in STAMPS: STAMPS.append(k)

def emit1(a, x):
    if isinstance(x, list):
        for y in x: a(y)
        return len(x)
    if isinstance(x, tuple):
        if x[0] == 'W': a.wait_vm_tag(x[1]); return 0
        if x[0] == 'L': a.wait_lg_tag(x[1]); return 0
        a(x[0], tag=x[1]); t = x[0]
    else:
        a(x); t = x
    if t.startswith(('v_exp', 'v_rcp', 'v_rsq', 'v_sin', 'v_cos', 'v_sqrt')): return 2
    if t.startswith('ds_write_b128'): return 7
    if t.startswith('ds_write_b64'): return 5
    if t.startswith('ds_read'): return 2
    return 1
def emit(a, L):
    for x in L: emit1(a, x)
def fill(a, L, budget):
    c = 0
    while L and c < budget: c += emit1(a, L.pop(0))

def cmul(d, x, y, t):
    return [f'v_pk_mul_f32 v[{t}:{t+1}], v[{x}:{x+1}], v[{y}:{y+1}] op_sel:[0,0] op_sel_hi:[1,0]',
            f'v_pk_fma_f32 v[{d}:{d+1}], v[{x}:{x+1}], v[{y}:{y+1}], v[{t}:{t+1}] op_sel:[1,1,0] op_sel_hi:[0,1,1] neg_lo:[1,0,0]']

def setup(a):
    a(f's_cmp_ge_u32 s2, 256')
    a(f's_cbranch_scc1 L_end')
    EST(a, 8)
    a(f's_load_dwordx16 s[16:31], s[0:1], 0')
    if OPT.get('cpf', 32):
        a(f's_cmp_ge_u32 s2, {OPT.get("cpf", 32)}')
        a(f's_cbranch_scc1 L_nocpf')
        a(f's_getpc_b64 s[14:15]')
        a.label('L_pc')
        a(f'v_lshlrev_b32 v2, 7, v0')
        a(f'v_min_u32 v2, L_codeend-L_pc-4, v2')
        a(f'global_load_dword v255, v2, s[14:15]')
        a(f'v_add_u32 v2, 32768, v2')
        a(f'v_min_u32 v2, L_codeend-L_pc-4, v2')
        a(f'global_load_dword v254, v2, s[14:15]')
        a.vmq = []
        a.label('L_nocpf')
    a(f's_load_dwordx16 s[32:47], s[0:1], 64')
    a(f's_load_dwordx2 {sp(S_WS)}, s[0:1], 128')
    a(f'v_lshrrev_b32 v2, 6, v0')
    a(f'v_and_b32 v1, 63, v0')
    a(f'v_readfirstlane_b32 s{S_W}, v2')
    a(f's_and_b32 s{S_XCD}, s2, 7')
    a(f's_lshr_b32 s{S_LOC}, s2, 3')
    a(f's_mul_i32 s{S_CW}, s{S_XCD}, 28')
    a(f's_add_u32 s{S_CW}, s{S_CW}, s{S_LOC}')
    if PROF:
        a(f's_lshl_b32 s100, s2, 2')
        a(f's_add_u32 s100, s100, s{S_W}')
        a(f's_lshl_b32 s100, s100, 6')
        a(f's_add_u32 s100, s100, {WS_PROF}')
    a(f's_lshr_b32 s{S_CH}, s{S_W}, 1')
    a(f's_and_b32 s{S_PAR}, s{S_W}, 1')
    a(f's_mul_i32 s6, s{S_LOC}, 37')
    a(f's_lshr_b32 s6, s6, 8')
    a(f's_mul_i32 s7, s6, 7')
    a(f's_sub_u32 s{S_FT}, s{S_LOC}, s7')
    a(f's_lshl_b32 s{S_TT}, s{S_XCD}, 2')
    a(f's_add_u32 s{S_TT}, s{S_TT}, s6')

def stats_loads(a):
    a(f's_lshl_b32 s{S_R0}, s2, 3')
    a(f's_lshl_b32 s6, s{S_CH}, 2')
    a(f's_add_u32 s{S_R0}, s{S_R0}, s6')
    a(f's_mul_i32 s6, s{S_R0}, 896')
    a(f'v_lshrrev_b32 v2, 5, v1')
    a(f'v_mul_u32_u24 v2, {1792 - 1024}, v2')
    a(f'v_lshl_add_u32 v3, v1, 5, s6')
    a(f'v_add_u32 v3, v2, v3')
    for i in range(4, 20): a(f'v_mov_b32 v{i}, 0')
    a(f's_mov_b32 exec_lo, 0x0fffffff')
    a(f's_mov_b32 exec_hi, 0x0fffffff')
    a(f'global_load_dwordx4 v[4:7], v3, {sp(S_AU)}')
    a(f'global_load_dwordx4 v[8:11], v3, {sp(S_AU)} offset:16')
    a(f'global_load_dwordx4 v[12:15], v3, {sp(S_AU)} offset:896')
    a(f'global_load_dwordx4 v[16:19], v3, {sp(S_AU)} offset:912')
    a(f's_mov_b64 exec, -1')

def tag_setup(a):
    a(f's_add_u32 s{S_E}, s{S_E}, 1')
    a(f's_mul_i32 s{S_TAG}, s{S_E}, 0x9E3779B1')
    a(f's_add_u32 s{S_TAG}, s{S_TAG}, 0x7F4A7C15')

def stats(a):
    a(f'v_mov_b32 v2, 0x3f803f80')
    for i in range(8):
        for r, base in ((0, 4), (1, 12)):
            s, q = 20 + 2 * r, 21 + 2 * r
            a(f'v_dot2_f32_bf16 v{s}, v{base+i}, v2, ' + ('0' if i == 0 else f'v{s}'))
            a(f'v_dot2_f32_bf16 v{q}, v{base+i}, v{base+i}, ' + ('0' if i == 0 else f'v{q}'))
    for ctl in ('row_shr:1 row_mask:0xf bank_mask:0xf bound_ctrl:0', 'row_shr:2 row_mask:0xf bank_mask:0xf bound_ctrl:0',
                'row_shr:4 row_mask:0xf bank_mask:0xf bound_ctrl:0', 'row_shr:8 row_mask:0xf bank_mask:0xf bound_ctrl:0',
                'row_bcast:15 row_mask:0xa bank_mask:0xf'):
        for v in (20, 21, 22, 23):
            a(f'v_add_f32_dpp v{v}, v{v}, v{v} {ctl}')
    a(f's_mov_b32 s8, 0x3b124925')
    a(f'v_pk_mul_f32 v[20:21], v[20:21], s[8:9] op_sel_hi:[1,0]')
    a(f'v_pk_mul_f32 v[22:23], v[22:23], s[8:9] op_sel_hi:[1,0]')
    a(f's_mov_b32 s8, 0x3727c5ac')
    a(f'v_fma_f32 v21, -v20, v20, v21')
    a(f'v_fma_f32 v23, -v22, v22, v23')
    a(f'v_max_f32 v21, 0, v21')
    a(f'v_max_f32 v23, 0, v23')
    a(f'v_cvt_pk_bf16_f32 v4, v21, v23')
    a(f'v_lshrrev_b32 v2, 5, v1')
    a(f'v_lshlrev_b32 v21, 16, v4')
    a(f'v_and_b32 v23, 0xffff0000, v4')
    a(f'v_add_f32 v21, s8, v21')
    a(f'v_add_f32 v23, s8, v23')
    a(f'v_cvt_pk_bf16_f32 v4, v21, v23')
    a(f's_lshl_b32 s8, s2, 4')
    a(f's_lshl_b32 s9, s{S_CH}, 14')
    a(f's_add_u32 s8, s8, s9')
    a(f'v_lshlrev_b32 v21, 16, v4')
    a(f'v_and_b32 v23, 0xffff0000, v4')
    a(f'v_sqrt_f32 v21, v21')
    a(f'v_sqrt_f32 v23, v23')
    a(f's_add_u32 s8, s8, {WS_STATS}')
    a(f'v_cvt_pk_bf16_f32 v8, v20, v22')
    a(f'v_cvt_pk_bf16_f32 v4, v21, v23')
    a(f'v_lshl_add_u32 v2, v2, 13, s8')
    a(f'v_add_u32 v3, 4096, v2')
    a(f'v_and_b32 v5, 0xffff0000, v4')
    a(f'v_lshlrev_b32 v4, 16, v4')
    a(f'v_rcp_f32 v5, v5')
    a(f'v_rcp_f32 v4, v4')
    a(f'v_and_b32 v9, 0xffff0000, v8')
    a(f'v_lshlrev_b32 v8, 16, v8')
    for r in (6, 7, 10, 11): a(f'v_mov_b32 v{r}, s{S_TAG}')
    a(f'v_pk_mul_f32 v[8:9], v[8:9], v[4:5] neg_lo:[1,0] neg_hi:[1,0]')
    a(f's_mov_b32 exec_lo, 0x80000000')
    a(f's_mov_b32 exec_hi, 0x80000000')
    a(f'global_store_dwordx4 v2, v[4:7], {sp(S_WS)} sc1')
    a(f'global_store_dwordx4 v3, v[8:11], {sp(S_WS)} sc1')
    a(f's_mov_b64 exec, -1')

def xt_loads(a):
    a(f's_lshl_b32 s6, s{S_TT}, 1')
    a(f's_add_u32 s6, s6, s{S_CH}')
    a(f's_mul_i32 s6, s6, {32*896}')
    a(f's_lshl_b32 s7, s{S_FT}, 1')
    a(f's_add_u32 s7, s7, s{S_PAR}')
    a(f's_lshl_b32 s7, s7, 6')
    a(f's_add_u32 s6, s6, s7')
    a(f'v_lshrrev_b32 v33, 2, v1')
    a(f'v_mul_u32_u24 v33, 896, v33')
    a(f'v_and_b32 v34, 3, v1')
    a(f'v_lshl_add_u32 v33, v34, 4, v33')
    a(f'v_add_u32 v33, s6, v33')
    a(f's_lshl_b32 s7, s{S_W}, 11')
    a(f's_add_u32 m0, s7, {L_XT}')
    a(f'v_add_u32 v34, {16*896 - 1024}, v33')
    a(f'global_load_lds_dwordx4 v33, {sp(S_AU)}', tag='xt')
    a(f'global_load_lds_dwordx4 v34, {sp(S_AU)} offset:1024', tag='xt')

def xt_addr(a):
    a(f'v_lshrrev_b32 v36, 2, v1')
    a(f'v_bfe_u32 v37, v1, 1, 1')
    a(f'v_lshl_add_u32 v36, v37, 4, v36')
    a(f'v_lshlrev_b32 v36, 6, v36')
    a(f'v_and_b32 v37, 1, v1')
    a(f'v_lshl_add_u32 v36, v37, 3, v36')
    a(f's_lshl_b32 s7, s{S_W}, 11')
    a(f's_add_u32 s7, s7, {L_XT}')
    a(f'v_add_u32 v36, s7, v36')
    a(f's_lshl_b32 s6, s{S_FT}, 1')
    a(f's_add_u32 s6, s6, s{S_PAR}')
    a(f's_mul_i32 s6, s6, {32*XTS}')
    a(f's_lshl_b32 s7, s{S_TT}, 1')
    a(f's_add_u32 s7, s7, s{S_CH}')
    a(f's_lshl_b32 s7, s7, 7')
    a(f's_add_u32 s6, s6, s7')
    a(f's_add_u32 s6, s6, {WS_XT}')
    a(f'v_and_b32 v37, 7, v1')
    a(f'v_mul_u32_u24 v37, {XTS}, v37')
    a(f'v_and_b32 v38, 48, v1')
    a(f'v_add3_u32 v37, v37, v38, s6')
    a(f'v_and_b32 v38, 8, v1')
    a(f'v_lshl_add_u32 v37, v38, 3, v37')

def xt_publish(a, R):
    a.wait_vm_tag('xt')
    for q in range(4): a(f'ds_read_b64_tr_b16 v[{R+4*q}:{R+4*q+1}], v36 offset:{16*q}')
    for q in range(4): a(f'v_mov_b32 v{R+4*q+3}, s{S_TAG}')
    for q in range(4):
        a(f'v_mov_b32 v{R+4*q+2}, v{R+4*q+1}')
        a(f'v_mov_b32 v{R+4*q+1}, s{S_TAG}')
        a(f'global_store_dwordx4 v37, v[{R+4*q}:{R+4*q+3}], {sp(S_WS)} sc1')
        if q < 3: a(f'v_add_u32 v37, {8*XTS}, v37')

def odd_only(a, name, fn):
    a(f's_cmp_eq_u32 s{S_PAR}, 0')
    a(f's_cbranch_scc1 L_{name}')
    st = a.state()
    fn(a)
    a.label(f'L_{name}')
    return st

def spare(a):
    a.label('L_spare')
    a(f's_sub_u32 s12, s{S_LOC}, 28')
    a(f's_lshl_b32 s10, s12, 3')
    a(f's_add_u32 s10, s10, s{S_XCD}')
    a(f'v_min_u32 v24, 223, v0')
    a(f'v_lshlrev_b32 v24, 2, v24')
    a(f'global_load_dword v25, v24, {sp(S_C)}')
    a(f's_load_dword s{S_E}, {sp(S_WS)}, {WS_EPOCH}')
    a(f's_cmp_ge_u32 s10, 28')
    a(f's_cbranch_scc1 L_spare_idle')
    st = a.state()
    a(f'v_lshrrev_b32 v29, 3, v1')
    a(f'v_mul_u32_u24 v26, 7, v29')
    a(f's_and_b32 s13, s10, 1')
    a(f's_mul_i32 s11, s13, 224')
    a(f's_mul_i32 s14, s{S_W}, 56')
    a(f's_add_u32 s11, s11, s14')
    a(f'v_add_u32 v26, s11, v26')
    a(f'v_mul_u32_u24 v27, 5376, v26')
    a(f'v_and_b32 v28, 7, v1')
    a(f'v_lshlrev_b32 v28, 4, v28')
    a(f's_lshr_b32 s11, s10, 1')
    a(f's_lshl_b32 s11, s11, 7')
    a(f'v_add3_u32 v27, v27, v28, s11')
    for i in range(7):
        a(f'global_load_dwordx4 v[{64+4*i}:{67+4*i}], v27, {sp(S_WM)}')
        if i < 6: a(f'v_add_u32 v27, 5376, v27')
    vm_ev = list(a.vmq)
    odd_only(a, 'sp_ld', stats_loads)
    a.vmq = list(vm_ev)
    EST(a, 9)
    a(f'v_mul_u32_u24 v30, 14, v29')
    a(f's_mul_i32 s11, s{S_W}, 112')
    a(f'v_add_u32 v30, s11, v30')
    a(f'v_mul_u32_u24 v31, 5376, v30')
    a(f's_lshl_b32 s11, s10, 7')
    a(f's_add_u32 s11, s11, {14*128}')
    a(f'v_add3_u32 v31, v31, v28, s11')
    a(f'v_lshlrev_b32 v26, 2, v26')
    a(f'v_lshlrev_b32 v30, 2, v30')
    a(f'v_lshrrev_b32 v29, 3, v0')
    a(f'v_lshlrev_b32 v29, 8, v29')
    a(f'v_lshl_add_u32 v29, v28, 1, v29')
    a(f'v_and_b32 v200, 31, v1')
    a(f'v_lshlrev_b32 v201, 3, v200')
    a(f'v_lshrrev_b32 v202, 5, v1')
    a(f'v_lshl_add_u32 v202, v202, 12, v201')
    a(f'v_lshlrev_b32 v34, 16, v25')
    a(f'v_and_b32 v35, 0xffff0000, v25')
    a(f's_mov_b32 s8, 0xbfb8aa3b')
    a(f'v_mul_f32 v32, s8, v34')
    a(f'v_mul_f32 v33, s8, v35')
    a(f'v_exp_f32 v32, v32')
    a(f'v_exp_f32 v33, v33')
    a(f'v_add_f32 v32, 1.0, v32')
    a(f'v_add_f32 v33, 1.0, v33')
    a(f'v_rcp_f32 v32, v32')
    a(f'v_rcp_f32 v33, v33')
    a(f'v_mul_f32 v34, v34, v32')
    a(f'v_mul_f32 v35, v35, v33')
    a(f'v_cvt_pk_bf16_f32 v34, v34, v35')
    a(f'v_and_b32 v32, 0xffff, v34')
    a(f'v_lshrrev_b32 v33, 16, v34')
    a(f'v_lshlrev_b32 v24, 1, v24')
    a(f'ds_write_b64 v24, v[32:33]')
    EST(a, 1)
    tag_setup(a)
    EST(a, 2)
    a.barrier()
    EST(a, 3)
    for i in range(7): a(f'ds_read_b32 v{34+i}, v26 offset:{4*i}')
    for task, n in ((0, 7), (1, 14)):
        if task == 1:
            a(f's_cmp_eq_u32 s{S_PAR}, 0')
            a(f's_cbranch_scc1 L_sp_st')
            st4 = a.state()
            a.force_wait(vm=0)
            stats(a)
            a.label('L_sp_st')
            a.set_state(st4); a.hist = []
            EST(a, 10)
            for i in range(14):
                a(f'global_load_dwordx4 v[{64+4*i}:{67+4*i}], v31, {sp(S_WM)}')
                if i < 13: a(f'v_add_u32 v31, 5376, v31')
            for i in range(7): a(f'ds_read_b64 v[{34+2*i}:{35+2*i}], v30 offset:{8*i}')
        for i in range(n): a(f'v_lshlrev_b32 v{48+i}, 16, v{34+i}')
        acc = 176
        for i in range(n):
            for k in range(4):
                w = 64 + 4 * i + k
                a(f'v_dot2_f32_bf16 v{acc+2*k}, v{w}, v{34+i}, ' + ('0' if i == 0 else f'v{acc+2*k}'))
                a(f'v_dot2_f32_bf16 v{acc+2*k+1}, v{w}, v{48+i}, ' + ('0' if i == 0 else f'v{acc+2*k+1}'))
        if task == 0: EST(a, 11)
        a(f'ds_write_b128 v29, v[{acc}:{acc+3}] offset:{2048+8192*task}')
        a(f'ds_write_b128 v29, v[{acc+4}:{acc+7}] offset:{2048+8192*task+16}')
        a.barrier()
        if task == 0: EST(a, 12)
        lab = f'L_spare_red{task}'
        a(f's_cmp_lg_u32 s{S_W}, 0')
        a(f's_cbranch_scc1 {lab}')
        st2 = a.state()
        for i in range(16):
            a(f'ds_read_b64 v[{204+2*i}:{205+2*i}], v202 offset:{2048+8192*task+256*i}')
        for i in range(1, 16):
            a(f'v_pk_add_f32 v[204:205], v[204:205], v[{204+2*i}:{205+2*i}]')
        a(f'v_mov_b32 v206, v204')
        a(f'v_mov_b32 v207, v205')
        a(f'v_permlane32_swap_b32 v204, v206')
        a(f'v_permlane32_swap_b32 v205, v207')
        a(f'v_pk_add_f32 v[204:205], v[204:205], v[206:207]')
        if task == 0:
            a(f'v_mov_b32 v206, s{S_TAG}')
            a(f'v_mov_b32 v207, s{S_TAG}')
            a(f's_mul_i32 s11, s13, 7168')
            a(f's_lshr_b32 s14, s10, 1')
            a(f's_lshl_b32 s14, s14, 9')
            a(f's_add_u32 s11, s11, s14')
            a(f's_add_u32 s11, s11, {WS_MODA}')
            a(f'v_lshl_add_u32 v203, v200, 4, s11')
            a(f's_mov_b32 exec_hi, 0')
            a(f'global_store_dwordx4 v203, v[204:207], {sp(S_WS)} sc1')
        else:
            a(f'v_cvt_pk_bf16_f32 v204, v204, v205')
            a(f'v_mov_b32 v205, s{S_TAG}')
            a(f's_lshl_b32 s11, s10, 8')
            a(f's_add_u32 s11, s11, {WS_MODG + 448*8}')
            a(f'v_add_u32 v203, s11, v201')
            a(f's_mov_b32 exec_hi, 0')
            a(f'global_store_dwordx2 v203, v[204:205], {sp(S_WS)} sc1')
        a(f's_mov_b32 exec_hi, -1')
        a.label(lab)
        a.set_state(st2); a.hist = []
        EST(a, 13 + task)
    a(f's_branch L_spare_end')
    a.label('L_spare_idle')
    a.set_state(st)
    stats_loads(a)
    EST(a, 9)
    tag_setup(a)
    a(f's_barrier')
    stats(a)
    EST(a, 10)
    a.label('L_spare_end')
    a.vmq = []; a.lgq = []; a.hist = []
    if OPT.get('early'):
        a.force_wait(vm=0, lgkm=0)
        EST(a, 15)
        a.force_wait(vm=0, lgkm=0)
        stamps_out(a)
    a(f's_endpgm')

def addr_setup():
    L = []
    L.append(f'v_lshrrev_b32 v236, 5, v1')
    L.append(f'v_bfe_u32 v237, v1, 2, 2')
    L.append(f'v_lshl_add_u32 v236, v236, 2, v237')
    L.append(f'v_lshlrev_b32 v236, 7, v236')
    L.append(f'v_bfe_u32 v238, v1, 4, 1')
    L.append(f'v_lshl_add_u32 v236, v238, 5, v236')
    L.append(f'v_and_b32 v238, 3, v1')
    L.append(f'v_lshl_add_u32 v236, v238, 3, v236')
    L.append(f'v_lshrrev_b32 v237, 1, v237')
    L.append(f'v_lshl_add_u32 v{V_T0}, v237, 6, v236')
    L.append(f'v_xor_b32 v{V_T1}, 64, v{V_T0}')
    L.append(f's_mul_i32 s6, s{S_W}, {SL}')
    L.append(f'v_add_u32 v{V_A0}, s6, v{V_T0}')
    L.append(f'v_add_u32 v{V_A1}, s6, v{V_T1}')
    L.append(f's_lshl_b32 s6, s{S_W}, 13')
    L.append(f's_add_u32 s6, s6, {L_H2}')
    L.append(f'v_add_u32 v{V_X0}, s6, v{V_T0}')
    L.append(f'v_add_u32 v{V_X1}, s6, v{V_T1}')
    L.append(f'v_lshrrev_b32 v236, 3, v1')
    L.append(f'v_bfe_u32 v237, v1, 4, 1')
    L.append(f'v_lshlrev_b32 v237, 2, v237')
    L.append(f'v_and_b32 v238, 7, v1')
    L.append(f'v_xor_b32 v237, v237, v238')
    L.append(f'v_lshlrev_b32 v237, 4, v237')
    L.append(f'v_mul_u32_u24 v238, 3584, v236')
    L.append(f'v_add_u32 v{V_D1}, v237, v238')
    L.append(f'v_mul_u32_u24 v238, 896, v236')
    L.append(f'v_add_u32 v{V_D2}, v237, v238')
    for i in range(1, 4):
        L.append(f'v_add_u32 v{V_D1+i}, {i*(8*3584-1024)}, v{V_D1}')
        L.append(f'v_add_u32 v{V_D2+i}, {i*(8*896-1024)}, v{V_D2}')
    L.append(f's_lshl_b32 s6, s{S_FT}, 9')
    L.append(f's_lshl_b32 s7, s{S_W}, 7')
    L.append(f's_add_u32 s6, s6, s7')
    L.append(f's_add_u32 s{SRD1}, s{S_W1}, s6')
    L.append(f's_addc_u32 s{SRD1+1}, s{S_W1+1}, 0')
    L.append(f's_sub_u32 s{SRD1+2}, {448*3584}, s6')
    L.append(f's_mov_b32 s{SRD1+3}, 0x20000')
    L.append(f's_mul_i32 s6, s{S_W}, {448*896}')
    L.append(f's_lshl_b32 s7, s{S_FT}, 7')
    L.append(f's_add_u32 s6, s6, s7')
    L.append(f's_add_u32 s{SRD2}, s{S_W2}, s6')
    L.append(f's_addc_u32 s{SRD2+1}, s{S_W2+1}, 0')
    L.append(f's_sub_u32 s{SRD2+2}, {1792*896}, s6')
    L.append(f's_mov_b32 s{SRD2+3}, 0x20000')
    return L

def dma_list(srd, vd, rs, ks0, nks, slice_bytes, lds_base, tag):
    L = [f's_mul_i32 s15, s{S_W}, {slice_bytes}', f's_add_u32 s15, s15, {lds_base}']
    n = 2 * nks
    if OPT.get('e3') and tag in ('w2c', 'w2d', 'w2e'): srd = 96 if False else srd; rs = 0; ks0 = 0; vd = V_T0
    for g in range(0, n, 4):
        L.append(f's_add_u32 m0, s15, {g*1024}')
        L.append(f's_mov_b32 s9, {(ks0*16 + g*8)*rs}')
        for i in range(min(4, n - g)):
            L.append((f'buffer_load_dwordx4 v{vd + (0 if vd == V_T0 else i)}, s[{srd}:{srd+3}], s9 offen offset:{1024*i} lds', tag))
    return L

def tr_list(dst, va, ks_list, local0, tag=None):
    L = []
    for ks in ks_list:
        for ct in range(2):
            k, r = dst(ct, ks)
            for sec in range(2):
                L.append((f'ds_read_b64_tr_b16 {k}[{r+2*sec}:{r+2*sec+1}], v{va[ct]} offset:{(ks-local0)*2048 + sec*1024}', tag))
    return L

def tagcheck(a, tagregs, vt):
    first = True
    for r in tagregs:
        if first: a(f'v_xor_b32 v{vt}, s{S_TAG}, v{r}'); first = False
        else: a(f'v_bitop3_b32 v{vt}, v{r}, s{S_TAG}, v{vt} bitop3:0xbe')
    a(f'v_cmp_ne_u32 vcc, 0, v{vt}')

def poll(a, name, loads, tagregs, vt=2, preissued=False):
    if not preissued:
        for l in loads: a(l)
    tagcheck(a, tagregs, vt)
    a(f's_mov_b32 s8, 0')
    a(f's_cbranch_vccz L_{name}_done')
    st = a.state()
    a.label(f'L_{name}')
    if OPT.get('slp', 4): a(f's_sleep {OPT.get("slp", 4)}')
    for l in loads: a(l)
    tagcheck(a, tagregs, vt)
    a(f's_add_u32 s8, s8, 1')
    a(f's_cbranch_vccz L_{name}_done')
    a(f's_cmp_lt_u32 s8, 0x40000')
    a(f's_cbranch_scc1 L_{name}')
    a.label(f'L_{name}_done')
    h = a.hist
    a.set_state(st); a.hist = h

def flag_ops(vaddr, vtag):
    return [f's_mov_b64 exec, 1', f'global_store_dword v{vaddr}, v{vtag}, {sp(S_WS)} sc1', f's_mov_b64 exec, -1']

def w1dst(ct, ks): return ('a', (ct * 28 + ks) * 4)

V_X = 24
V_PAR = 208
V_GA = 40
V_XA = 38
def addr1(a, mid):
    for i in range(4): a(f'v_mov_b32 v{56+i}, 0')
    a(f'v_min_u32 v32, 29, v1')
    a(f's_mul_i32 s6, s{S_PAR}, {UR_CH}')
    a(f's_add_u32 s6, s6, {L_UR + 4096}')
    a(f'v_lshl_add_u32 v32, v32, 4, s6')
    a(f'ds_write_b128 v32, v[56:59]')
    a(f'v_and_b32 v32, 1, v1')
    a(f'v_lshlrev_b32 v32, 4, v32')
    a(f'v_bfe_u32 v33, v1, 1, 1')
    a(f'v_mul_u32_u24 v33, {KC_O}, v33')
    a(f'v_add_u32 v32, v32, v33')
    a(f'v_bfe_u32 v33, v1, 2, 1')
    a(f'v_mul_u32_u24 v33, {KC_CH}, v33')
    a(f'v_add_u32 v32, v32, v33')
    a(f'v_add_u32 v32, {L_KC}, v32')
    a(f'ds_write_b128 v32, v[56:59]')
    a(f'v_and_b32 v32, 1, v1')
    a(f'v_mul_u32_u24 v32, {T_CH}, v32')
    a(f'v_add_u32 v32, {L_T + 64}, v32')
    a(f'ds_write_b64 v32, v[56:57]')
    a(f's_mul_i32 s6, s{S_CH}, {KG_CH}')
    a(f'v_lshl_add_u32 v51, v1, 4, s6')
    for i in range(4): a(f'v_mov_b32 v{56+i}, 0x3f80')
    a(f'ds_write_b128 v51, v[56:59]')
    a(f'v_lshlrev_b32 v32, 3, v0')
    for e in range(9): a(f'v_add_u32 v{V_GA+e}, {e-1}, v32')
    a(f'v_max_i32 v{V_GA}, 0, v{V_GA}')
    for e in range(9): a(f'v_cvt_f32_u32 v{V_GA+e}, v{V_GA+e}')
    for e in range(9): a(f'v_cvt_pk_bf16_f32 v{V_GA+e}, v{V_GA+e}, v{V_GA+e}')
    for e in range(9): a(f'v_and_b32 v{V_GA+e}, 0xffff0000, v{V_GA+e}')
    for e in range(9): a(f'v_cvt_u32_f32 v{V_GA+e}, v{V_GA+e}')
    for e in range(9):
        r = V_GA + e
        if e == OPT.get('mid', 4): mid(a)
        a(f'v_lshrrev_b32 v32, 8, v{r}')
        a(f'v_and_b32 v33, 7, v{r}')
        a(f'v_min_u32 v34, 2, v32')
        a(f'v_lshrrev_b32 v33, v34, v33')
        a(f'v_lshl_add_u32 v34, v32, 1, 8')
        a(f'v_add_u32 v35, 12, v32')
        a(f'v_lshlrev_b32 v32, 3, v32')
        a(f'v_min3_u32 v34, v34, v35, v32')
        a(f'v_add_u32 v33, v33, v34')
        a(f'v_bfe_u32 v34, v{r}, 3, 5')
        a(f'v_mul_u32_u24 v34, {T_ROW}, v34')
        a(f'v_lshl_add_u32 v{r}, v33, 1, v34')
        a(f'v_add_u32 v{r}, {L_T}, v{r}')
    a(f'v_cmp_eq_u32 vcc, 0, v0')
    a(f'v_mov_b32 v32, {L_T + 64}')
    a(f'v_cndmask_b32 v{V_GA}, v{V_GA}, v32, vcc')
    emit(a, addr_setup())
    a(f'v_and_b32 v49, 15, v1')
    a(f'v_lshrrev_b32 v50, 4, v1')
    a(f's_mul_i32 s6, s{S_CH}, {KG_CH}')
    a(f'v_mul_u32_u24 v52, {KG_ROW}, v49')
    a(f'v_lshl_add_u32 v52, v50, 8, v52')
    a(f'v_add_u32 v52, s6, v52')
    a(f's_mul_i32 s7, s{S_PAR}, {16*KG_ROW}')
    a(f'v_add_u32 v53, s7, v52')
    a(f's_mul_i32 s6, s{S_CH}, {T_CH}')
    a(f's_mul_i32 s7, s{S_PAR}, {16*T_ROW}')
    a(f's_add_u32 s6, s6, s7')
    a(f's_add_u32 s6, s6, {L_T}')
    a(f'v_mul_u32_u24 v54, {T_ROW}, v49')
    a(f'v_lshl_add_u32 v54, v50, 3, v54')
    a(f'v_add_u32 v54, s6, v54')
    a(f'v_lshlrev_b32 v55, 4, v0')
    a(f'v_add_u32 v55, {L_KC + 32}, v55')
    a(f'v_add_u32 v56, 2, v49')
    a(f'v_and_b32 v56, 0x1e, v56')
    a(f'v_lshlrev_b32 v56, 1, v56')
    a(f'v_lshl_add_u32 v56, v50, 4, v56')
    a(f'v_and_b32 v57, 1, v49')
    a(f'v_xor_b32 v57, 1, v57')
    a(f'v_mul_u32_u24 v57, {KC_O}, v57')
    a(f'v_add_u32 v56, v56, v57')
    a(f's_mul_i32 s6, s{S_CH}, {KC_CH}')
    a(f's_lshl_b32 s7, s{S_PAR}, 6')
    a(f's_add_u32 s6, s6, s7')
    a(f's_add_u32 s6, s6, {L_KC}')
    a(f'v_add_u32 v56, s6, v56')
    for k in range(1, 4): a(f'v_add_u32 v{56+k}, {1024*k}, v56')
    a(f's_mul_i32 s6, s{S_CH}, {UR_CH}')
    a(f's_add_u32 s6, s6, s7')
    a(f's_add_u32 s6, s6, {L_UR + 480}')
    a(f'v_lshlrev_b32 v60, 5, v49')
    a(f'v_sub_u32 v60, s6, v60')
    a(f'v_lshl_add_u32 v60, v50, 4, v60')
    a(f'v_lshlrev_b32 v61, 4, v0')
    a(f'v_sub_u32 v61, {L_UR + 4080}, v61')
    a(f'v_lshlrev_b32 v62, 4, v0')
    a(f'v_add_u32 v62, {WS_STATS + 4096}, v62')
    for k in range(1, 4): a(f'v_add_u32 v{220+k}, {8192*k}, v62')
    a(f's_mul_i32 s6, s{S_CW}, {2*XTS}')
    a(f's_add_u32 s6, s6, {WS_XT}')
    a(f'v_lshl_add_u32 v30, v0, 5, s6')
    a(f'v_add_u32 v31, {XTS}, v30')
    xt_addr(a)
    a(f'v_and_b32 v63, 1, v1')
    a(f'v_mul_u32_u24 v63, 7168, v63')
    a(f'v_bfe_u32 v32, v1, 1, 1')
    a(f'v_mul_u32_u24 v32, {224*16}, v32')
    a(f's_lshl_b32 s6, s{S_CW}, 4')
    a(f's_add_u32 s6, s6, {WS_MODA}')
    a(f'v_add3_u32 v63, v63, v32, s6')

def kgen(role):
    K = []
    K.append(f's_lshl_b32 s6, s{S_CH}, 4')
    K.append(f's_lshr_b32 s6, s{S_LDTV}, s6')
    K.append(f's_lshl_b32 s6, s6, 16')
    K.append(f'v_mov_b32 v2, s6')
    K.append(f'v_mul_f32 v2, 0x3fb8aa3b, v2')
    K.append(f'v_exp_f32 v2, v2')
    B = [64 + 28 * j for j in range(4)]
    ZR, ZF, W_, E1, E2, E4, E8, E256, E1K, P_, G_, G8, G12, T_, T2 = 0, 1, 2, 4, 6, 8, 4, 10, 12, 6, 14, 16, 18, 20, 22
    def un(j, d, arr):
        src = V_PAR + 2 * arr + (j >> 1)
        K.append(f'v_lshlrev_b32 v{d}, 16, v{src}' if j % 2 == 0 else f'v_and_b32 v{d}, 0xffff0000, v{src}')
    for j in range(4):
        un(j, B[j] + ZR, 0); un(j, B[j] + ZF, 1)
        if j == 0:
            K.append(f'v_cvt_pk_bf16_f32 v2, v2, v2')
            K.append(f'v_and_b32 v2, 0xffff0000, v2')
    for j in range(4):
        b = B[j]
        K.append(f'v_pk_mul_f32 v[{b+ZR}:{b+ZF}], v[{b+ZR}:{b+ZF}], v[2:3] op_sel_hi:[1,0]')
    K.append(f's_mov_b32 s6, 0x3fb8aa3b')
    K.append(f's_mov_b32 s7, 0x3e22f983')
    for j in range(4):
        b = B[j]
        K.append(f'v_pk_mul_f32 v[{b+ZR}:{b+ZF}], v[{b+ZR}:{b+ZF}], s[6:7]')
    def direct(dst, k):
        kf = {1: None, 8: '0x41000000', 256: '0x43800000', 1024: '0x44800000'}[k]
        if kf:
            K.append(f's_mov_b32 s6, {kf}')
            for j in range(4):
                b = B[j]
                K.append(f'v_pk_mul_f32 v[{b+T_}:{b+T_+1}], v[{b+ZR}:{b+ZF}], s[6:7] op_sel_hi:[1,0]')
        for j in range(4):
            b = B[j]
            K.append(f'v_fract_f32 v{b+T_+1}, v{b+(T_+1 if kf else ZF)}')
            K.append(f'v_exp_f32 v{b+T_}, v{b+(T_ if kf else ZR)}')
        for j in range(4):
            b = B[j]
            K.append(f'v_cos_f32 v{b+dst}, v{b+T_+1}')
            K.append(f'v_sin_f32 v{b+dst+1}, v{b+T_+1}')
        for j in range(4):
            b = B[j]
            K.append(f'v_pk_mul_f32 v[{b+dst}:{b+dst+1}], v[{b+dst}:{b+dst+1}], v[{b+T_}:{b+T_+1}] op_sel:[0,0] op_sel_hi:[1,0]')
    def put(row, src):
        o = 176 + 4 * (row % 2)
        for j in range(4):
            b = B[j]
            K.append(f'v_cvt_pk_bf16_f32 v{o+j}, v{b+src}, {"-" if role else ""}v{b+src+1}')
        K.append(f'ds_write_b128 v51, v[{o}:{o+3}] offset:{row*KG_ROW}')
    def mul4(d, x, y):
        c = [cmul(B[j] + d, B[j] + x, B[j] + y, B[j] + T2) for j in range(4)]
        K.extend([c[j][0] for j in range(4)] + [c[j][1] for j in range(4)])
    if role == 0:
        direct(E8, 8)
        put(1, E8)
        mul4(P_, E8, E8); put(2, P_)
        for i in range(3, 32):
            mul4(P_, P_, E8); put(i, P_)
    else:
        direct(E1, 1)
        for j in range(4):
            b = B[j]
            un(j, b + T_, 2); un(j, b + T_ + 1, 3); un(j, b + G8, 4); un(j, b + G8 + 1, 5)
        for j in range(4):
            b = B[j]
            K.append(f'v_pk_mul_f32 v[{b+T_}:{b+T_+1}], v[{b+T_}:{b+T_+1}], v[2:3] op_sel_hi:[1,0]')
        mul4(W_, G8, T_)
        put(32, W_)
        mul4(G_, W_, E1); put(33, G_)
        for jq in range(2, 8):
            mul4(G_, G_, E1); put(32 + jq, G_)
        direct(E256, 256)
        mul4(E2, E1, E1); mul4(E4, E2, E2)
        mul4(G8, W_, E256); put(40, G8)
        mul4(G_, G8, E2); put(41, G_)
        mul4(G_, G_, E2); put(42, G_)
        mul4(G_, G_, E2); put(43, G_)
        mul4(G12, G8, E256); put(44, G12)
        mul4(G_, G12, E4); put(45, G_)
        mul4(G12, G12, E256); put(46, G12)
        mul4(G_, G12, E4); put(47, G_)
        mul4(G8, G12, E256); put(48, G8)
        mul4(G_, G8, E256); put(49, G_)
        mul4(G_, G_, E256); put(50, G_)
        mul4(G_, G_, E256); put(51, G_)
        mul4(G_, G_, E256); put(52, G_)
    return K

def phase1(a):
    a(f's_lshl_b32 s6, s{S_CW}, 1')
    a(f's_add_u32 s6, s6, s{S_CH}')
    a(f's_lshl_b32 s6, s6, 9')
    a(f'v_lshl_add_u32 v32, v1, 3, s6')
    for i, s in enumerate((S_ARE, S_AIM)):
        a(f'global_load_dwordx2 v[{V_PAR+2*i}:{V_PAR+2*i+1}], v32, {sp(s)}')
    a(f's_lshl_b32 s7, s{S_CW}, 2')
    a(f's_load_dword s{S_LDTV}, {sp(S_LDT)}, s7')
    a(f's_load_dword s{S_DSKV}, {sp(S_DSK)}, s7')
    a(f's_load_dword s{S_E}, {sp(S_WS)}, {WS_EPOCH}')
    vm_even = list(a.vmq)
    odd_only(a, 'noodd', lambda a: [a(f'global_load_dwordx2 v[{V_PAR+4+2*i}:{V_PAR+5+2*i}], v32, {sp(s_)}') for i, s_ in enumerate((S_BRE, S_BIM, S_CRE, S_CIM))])
    EST(a, 9)
    def mid(a):
        xt_loads(a)
        vm_even.extend(a.vmq[-2:])
        odd_only(a, 'noodd2', stats_loads)
        EST(a, 11)
    addr1(a, mid)
    a(f's_mul_i32 s6, s{S_CW}, 7168')
    a(f's_mul_i32 s7, s{S_CH}, 3584')
    a(f's_add_u32 s6, s6, s7')
    a(f'v_min_u32 v224, 27, v1')
    a(f'v_lshl_add_u32 v224, v224, 7, s6')
    a(f's_lshl_b32 s6, s{S_LOC}, 2')
    a(f's_add_u32 s6, s6, s{S_W}')
    a(f's_lshl_b32 s6, s6, 13')
    a(f's_add_u32 s6, s6, {192*3584}')
    a(f'v_lshl_add_u32 v225, v1, 7, s6')
    stamp(a, 1)
    a(f's_cmp_eq_u32 s{S_PAR}, 0')
    a(f's_cbranch_scc1 L_pwave')
    st = a.state()
    for role in (1, 0):
        if role == 0:
            a.label('L_pwave'); a.set_state(st); a.vmq = list(vm_even)
        K = kgen(role)
        fill(a, K, OPT.get('xtpos', 200))
        while K[0].startswith('v_pk_mul_f32') and 's[6:7]' in K[0]: emit1(a, K.pop(0))
        tag_setup(a)
        xt_publish(a, 184)
        if role == 1:
            stats(a)
            stamp(a, 2)
        elif PROF: a(f's_memtime s[72:73]')
        if role == 0 and OPT.get('wt', 1) == 1:
            fill(a, K, OPT.get('wtpos', 300))
            a(f'global_load_dword v226, v224, {sp(S_W1)}')
            a(f'global_load_dword v227, v224, {sp(S_W2)}')
        emit(a, K)
        if role == 1: a(f's_branch L_kdone')
    xl = []
    a.label('L_kdone')
    a.vmq = []; a.hist = []; a.lgq = [(set(), 'ds', None)] * 15
    stamp(a, 3)
    a.barrier()
    FR = 64; RING = 8
    def kread(ks):
        r = FR + 12 * (ks % RING)
        a(f'ds_read_b128 v[{r}:{r+3}], v53 offset:{16*ks}')
        a(f'ds_read_b128 v[{r+4}:{r+7}], v52 offset:{32*KG_ROW + 16*ks}')
        a(f'ds_read_b128 v[{r+8}:{r+11}], v52 offset:{48*KG_ROW + 16*ks}')
    SG, XG = 160, 192
    pl = [f'global_load_dwordx4 v[{SG+4*i}:{SG+4*i+3}], v{62 if i < 2 else 220+i//2}, {sp(S_WS)} offset:{-4096 if i % 2 == 0 else 0} sc1' for i in range(8)]
    pl += [f'global_load_dwordx4 v[{XG+8*ch+4*i}:{XG+8*ch+4*i+3}], v{30+ch}, {sp(S_WS)} offset:{16*i} sc1' for ch in range(2) for i in range(2)]
    pl.append(f'global_load_dwordx4 v[208:211], v63, {sp(S_WS)} sc1')
    pq = list(pl)
    for ks in range(4): kread(ks)
    for k in range(16):
        if k + 4 < 16: kread(k + 4)
        if k >= 3 and pq: a(pq.pop(0))
        q = FR + 12 * (k % RING)
        a(f'v_mfma_f32_16x16x32_bf16 v[12:15], v[{q+4}:{q+7}], v[{q}:{q+3}], ' + ('0' if k == 0 else 'v[12:15]'))
        a(f'v_mfma_f32_16x16x32_bf16 v[16:19], v[{q+8}:{q+11}], v[{q}:{q+3}], ' + ('0' if k == 0 else 'v[16:19]'))
    emit(a, pq)
    EST(a, 10)
    a(f'v_cvt_pk_bf16_f32 v12, v12, v13')
    a(f'v_cvt_pk_bf16_f32 v13, v14, v15')
    a(f'v_cvt_pk_bf16_f32 v16, v16, v17')
    a(f'v_cvt_pk_bf16_f32 v17, v18, v19')
    a(f'ds_write_b64 v54, v[12:13]')
    a(f'ds_write_b64 v54, v[16:17] offset:32')
    stamp(a, 4)
    a.barrier()
    for ch in range(2):
        for e in range(9):
            a(f'ds_read_u16 v{64+16*ch+e}, v{V_GA+e} offset:{ch*T_CH}')
    for ch in range(2):
        g = 64 + 16 * ch; o = 96 + 8 * ch
        for q in range(4):
            a(f'v_lshl_or_b32 v{o+4+q}, v{g+2*q+1}, 16, v{g+2*q}')
        for q in range(4):
            a(f'v_lshl_or_b32 v{o+q}, v{g+2*q+2}, 16, v{g+2*q+1}')
        a(f'ds_write_b128 v55, v[{o}:{o+3}] offset:{ch*KC_CH}')
        a(f'ds_write_b128 v55, v[{o+4}:{o+7}] offset:{ch*KC_CH + KC_O}')
    stamp(a, 5)
    EST(a, 12)
    a.barrier()
    def aread(s_):
        base = 56 + s_ // 8; o = 32 * (s_ % 8)
        return [f'ds_read2_b32 a[{4*s_}:{4*s_+1}], v{base} offset0:{o} offset1:{o+1}',
                f'ds_read2_b32 a[{4*s_+2}:{4*s_+3}], v{base} offset0:{o+2} offset1:{o+3}']
    def bread(mu):
        k = mu + 3
        return [f'ds_read_b128 a[{128+4*k}:{131+4*k}], v60 offset:{128*(28-mu)}']
    for al in range(8): emit(a, aread(4 * al))
    poll(a, 'poll0', pl, [210] + [SG + 4 * i + 2 for i in range(8)] + [XG + 2 * i + 1 for i in range(8)], preissued=True)
    stamp(a, 6)
    if OPT.get('t1', 2) == 2: a(f'global_load_dword v227, v225, {sp(S_W1)}')
    if OPT.get('wt', 1) == 2:
        a(f's_lshl_b32 s6, s{S_PAR}, 1')
        a(f's_add_u32 s6, s6, {S_W1}') if False else None
        a(f'global_load_dword v226, v224, {sp(S_W1)}')
        a(f'global_load_dword v227, v224, {sp(S_W2)}')
    a(f'v_add_f32_dpp v208, v208, v208 quad_perm:[1,0,3,2] row_mask:0xf bank_mask:0xf')
    a(f'v_add_f32_dpp v209, v209, v209 quad_perm:[1,0,3,2] row_mask:0xf bank_mask:0xf')
    a(f'v_cvt_pk_bf16_f32 v208, v208, v209')
    for ch in range(2):
        for k in range(4):
            a(f'v_lshlrev_b32 v{64+8*ch+2*k}, 16, v{XG+8*ch+2*k}')
            a(f'v_and_b32 v{65+8*ch+2*k}, 0xffff0000, v{XG+8*ch+2*k}')
        if ch == 0:
            a(f'v_readlane_b32 s11, v208, 2')
            a(f'v_readlane_b32 s10, v208, 0')
    a(f's_lshl_b32 s13, s11, 16')
    a(f's_and_b32 s14, s11, 0xffff0000')
    a(f'v_add_f32_e64 v100, s13, 1.0')
    a(f'v_add_f32_e64 v101, s14, 1.0')
    a(f's_lshl_b32 s13, s10, 16')
    a(f's_and_b32 s14, s10, 0xffff0000')
    a(f'v_cvt_pk_bf16_f32 v101, v100, v101')
    a(f'v_mov_b32 v102, s13')
    a(f'v_mov_b32 v103, s14')
    for ch in range(2):
        for k in range(4):
            x = 64 + 8 * ch + 2 * k; h = 104 + 8 * ch + 2 * k; g = SG + 8 * k
            a(f'v_pk_fma_f32 v[{h}:{h+1}], v[{x}:{x+1}], v[{g}:{g+1}], v[{g+4}:{g+5}]')
        if ch == 0:
            a(f'v_lshlrev_b32 v100, 16, v101')
            a(f'v_and_b32 v101, 0xffff0000, v101')
    for ch in range(2):
        for k in range(4):
            h = 104 + 8 * ch + 2 * k
            a(f'v_pk_fma_f32 v[{h}:{h+1}], v[{h}:{h+1}], v[100:101], v[102:103] op_sel:[0,{ch},{ch}] op_sel_hi:[1,{ch},{ch}]')
        for q in range(4):
            a(f'v_cvt_pk_bf16_f32 v{120+4*ch+q}, v{104+8*ch+7-2*q}, v{104+8*ch+6-2*q}')
        a(f'ds_write_b128 v61, v[{120+4*ch}:{123+4*ch}] offset:{ch*UR_CH}')
    a.barrier()
    stamp(a, 7)
    for be in range(8): emit(a, bread(4 * be))
    if OPT.get('t1', 2) == 1: a(f'global_load_dword v227, v225, {sp(S_W1)}')
    ACC = 16
    sh = []
    sh.append(f's_lshl_b32 s13, s{S_DSKV}, 16')
    sh.append(f's_and_b32 s14, s{S_DSKV}, 0xffff0000')
    sh.append(f's_mul_i32 s6, s{S_W}, {Y_W}')
    sh.append(f's_add_u32 s6, s6, {L_Y}')
    sh.append(f'v_mul_u32_u24 v4, 80, v49')
    sh.append(f'v_lshl_add_u32 v4, v50, 4, v4')
    sh.append(f'v_add_u32 v4, s6, v4')
    BASE = 128
    for ch in range(2):
        for q in range(4):
            src = 120 + 4 * ch + q
            sh.append(f'v_lshlrev_b32 v14, 16, v{src}')
            sh.append(f'v_and_b32 v15, 0xffff0000, v{src}')
            sh.append(f'v_mul_f32 v{BASE+8*ch+7-2*q}, s{13+ch}, v14')
            sh.append(f'v_mul_f32 v{BASE+8*ch+6-2*q}, s{13+ch}, v15')
    sh.append(f'v_lshrrev_b32 v2, 1, v0')
    sh.append(f'v_mul_u32_u24 v2, 80, v2')
    sh.append(f'v_and_b32 v14, 1, v0')
    sh.append(f'v_lshl_add_u32 v2, v14, 5, v2')
    sh.append(f'v_add_u32 v2, {L_Y}, v2')
    sh.append(f's_mul_i32 s6, s{S_CW}, {2*X2S}')
    sh.append(f's_add_u32 s6, s6, {WS_X2T}')
    sh.append(f'v_lshl_add_u32 v8, v0, 4, s6')
    sh.append(f'v_add_u32 v9, {X2S}, v8')
    sh.append(f'v_min_u32 v144, 223, v0')
    sh.append(f'v_lshlrev_b32 v145, 3, v144')
    sh.append(f'v_add_u32 v145, {WS_MODG + 672*8}, v145')
    sh.append(f'v_and_b32 v146, 31, v1')
    sh.append(f's_lshl_b32 s6, s{S_FT}, 8')
    sh.append(f's_add_u32 s6, s6, {WS_MODG + 1120*8}')
    sh.append(f'v_lshl_add_u32 v147, v146, 3, s6')
    sh.append(f's_mul_i32 s6, s{S_W}, 224')
    sh.append(f's_add_u32 s6, s6, s{S_CW}')
    sh.append(f's_lshl_b32 s6, s6, 6')
    sh.append(f's_add_u32 s6, s6, {WS_FLAG1}')
    sh.append(f'v_mov_b32 v157, s6')
    sh.append(f'v_mov_b32 v239, s{S_TAG}')
    global PM
    PM = [f'global_load_dwordx2 v[148:149], v145, {sp(S_WS)} sc1',
          f'global_load_dwordx2 v[150:151], v145, {sp(S_WS)} offset:{224*8} sc1',
          f'global_load_dwordx2 v[152:153], v147, {sp(S_WS)} sc1',
          f'global_load_dwordx2 v[154:155], v156, {sp(S_WS)} sc1']
    sh.append(f's_lshl_b32 s6, s{S_CW}, 3')
    sh.append(f's_add_u32 s6, s6, {WS_MODG + 448*8}')
    sh.append(f'v_mov_b32 v156, s6')
    sh.extend(PM)
    dma = dma_list(SRD1, V_D1, 3584, 0, 12, SL, 0, 'w1r1')
    started = set(); nm = 0; pend_w = []
    for r in range(4):
        rd = []
        if r > 0: a.wait(lgkm=0)
        if r == 3: a.barrier()
        if r < 3:
            for al in range(8): rd += aread(4 * al + r + 1)
            for be in range(8): rd += bread(4 * be - r - 1)
        for be in range(8):
            k = 4 * be - r + 3
            for al in range(8 - be):
                c = al + be; s_ = 4 * al + r
                acc = f'v[{ACC+4*c}:{ACC+4*c+3}]'
                a(f'v_mfma_f32_16x16x32_bf16 {acc}, a[{4*s_}:{4*s_+3}], a[{128+4*k}:{131+4*k}], ' + (acc if c in started else '0'))
                started.add(c); nm += 1
                if pend_w and nm >= pend_w[0][0]:
                    cc = pend_w.pop(0)[1]
                    a(f'ds_write_b128 v4, v[{ACC+4*cc}:{ACC+4*cc+3}] offset:{1280*cc}')
                elif nm % OPT.get('dmak', 5) == 0 and dma:
                    while True:
                        x = dma.pop(0); emit1(a, x)
                        if isinstance(x, tuple): break
                elif rd: emit1(a, rd.pop(0))
                else: fill(a, sh, 2)
                if r == 3 and al == 0: pend_w.append((nm + 6, c))
        assert not rd, (r, len(rd))
    assert nm == 144 and not dma, (len(sh), len(dma))
    emit(a, sh)
    for _, cc in pend_w:
        a(f'ds_write_b128 v4, v[{ACC+4*cc}:{ACC+4*cc+3}] offset:{1280*cc}')
    a.barrier()
    stamp(a, 8)
    for ch in range(2):
        for p in range(2):
            for q in range(2):
                YR = 160
                r = YR + 16 * ch + 8 * p + 4 * q
                a(f'ds_read_b128 v[{r}:{r+3}], v2 offset:{(2*ch+p)*Y_W + 16*q}')
    poll(a, 'pollm', PM, [149, 151, 153, 155], vt=14, preissued=True)
    a(f'v_lshlrev_b32 v10, 16, v154')
    a(f'v_and_b32 v11, 0xffff0000, v154')
    for ch in range(2):
        for q in range(4):
            r = YR + 16 * ch + 2 * q; b = BASE + 8 * ch + 2 * q
            a(f'v_pk_add_f32 v[{r}:{r+1}], v[{r}:{r+1}], v[{b}:{b+1}]')
        for q in range(4):
            r = YR + 16 * ch + 2 * q
            a(f'v_pk_add_f32 v[{r}:{r+1}], v[{r}:{r+1}], v[{r+8}:{r+9}]')
        for q in range(4):
            r = YR + 16 * ch + 2 * q; b = 64 + 8 * ch + 2 * q
            a(f'v_pk_fma_f32 v[{r}:{r+1}], v[{r}:{r+1}], v[10:11], v[{b}:{b+1}] op_sel:[0,{ch},0] op_sel_hi:[1,{ch},1]')
        for q in range(4):
            r = YR + 16 * ch + 2 * q
            a(f'v_cvt_pk_bf16_f32 v{96+4*ch+q}, v{r}, v{r+1}')
        a(f'global_store_dwordx4 v{8+ch}, v[{96+4*ch}:{99+4*ch}], {sp(S_WS)} sc1', tag='x2t')
    stamp(a, 9)

RAW, F32, SS, QQ, PC, XST = 16, 72, 184, 192, 200, 228
BC = 112
def w2dst(u, k): return ('a', (k * 2 + u) * 4)
def dmas(a, L, n):
    while L and n > 0:
        x = L.pop(0); emit1(a, x)
        if isinstance(x, tuple): n -= 1

def phase2(a):
    a.wait_vm_tag('w1r1')
    emit(a, tr_list(w1dst, (V_A0, V_A1), range(0, 12), 0, 'w1tr'))
    a(f'v_lshlrev_b32 v14, 16, v150')
    a(f'v_and_b32 v15, 0xffff0000, v150')
    a(f'v_pk_add_f32 v[14:15], v[14:15], 1.0 op_sel_hi:[1,0]')
    a(f'v_lshlrev_b32 v17, 16, v148')
    a(f'v_and_b32 v19, 0xffff0000, v148')
    a(f'v_cvt_pk_bf16_f32 v150, v14, v15')
    a(f'v_lshlrev_b32 v144, 4, v144')
    a(f'v_add_u32 v144, {L_PC}, v144')
    a(f'v_lshlrev_b32 v16, 16, v150')
    a(f'v_and_b32 v18, 0xffff0000, v150')
    a(f'v_lshlrev_b32 v14, 16, v152')
    a(f'v_and_b32 v15, 0xffff0000, v152')
    a(f'v_lshlrev_b32 v146, 3, v146')
    a(f'v_add_u32 v146, {L_GB}, v146')
    a(f's_mov_b32 s6, 0x3fb8aa3b')
    a(f's_mov_b32 s7, 0x3f317218')
    a(f'v_pk_mul_f32 v[16:17], v[16:17], s[6:7] op_sel_hi:[1,0]')
    a(f'v_pk_mul_f32 v[18:19], v[18:19], s[6:7] op_sel_hi:[1,0]')
    a(f'v_pk_mul_f32 v[14:15], v[14:15], s[6:7] op_sel:[0,1] op_sel_hi:[1,1]')
    a.wait_lg_tag('w1tr')
    d2 = dma_list(SRD1, V_D1, 3584, 12, 12, SL, 0, 'w1r2')
    dmas(a, d2, OPT.get('r2pre', 8))
    a.wait_vm_tag('x2t')
    emit(a, flag_ops(157, 239))
    stamp(a, 10)
    a(f'ds_write_b128 v144, v[16:19]')
    a(f'ds_write_b64 v146, v[14:15]')
    a.barrier()
    emit(a, d2)
    emit(a, dma_list(SRD1, V_D1, 3584, 24, 4, 8192, L_H2, 'w1r2'))
    a(f'v_min_u32 v4, 55, v1')
    a(f's_lshr_b32 s6, s{S_TT}, 3')
    a(f's_lshl_b32 s6, s6, 2')
    a(f's_add_u32 s6, s6, s{S_W}')
    a(f's_mul_i32 s6, s6, {56*64}')
    a(f's_add_u32 s6, s6, {WS_FLAG1}')
    a(f'v_lshl_add_u32 v12, v4, 6, s6')
    a(f'v_lshrrev_b32 v4, 3, v0')
    a(f'v_and_b32 v5, 7, v0')
    a(f'v_mul_u32_u24 v6, {X2S}, v4')
    a(f'v_lshl_add_u32 v6, v5, 4, v6')
    a(f's_lshl_b32 s6, s{S_TT}, 7')
    a(f's_add_u32 s6, s6, {WS_X2T}')
    a(f'v_add_u32 v6, s6, v6')
    a(f's_mul_i32 s7, s{S_FT}, {64*X2S}')
    a(f'v_add_u32 v7, s7, v6')
    a(f'v_bfe_u32 v8, v4, 1, 1')
    a(f'v_lshlrev_b32 v8, 2, v8')
    a(f'v_xor_b32 v8, v8, v5')
    a(f'v_lshlrev_b32 v8, 4, v8')
    a(f'v_lshl_add_u32 v8, v4, 7, v8')
    a(f'v_add_u32 v8, {L_H2}, v8')
    a(f'v_lshlrev_b32 v9, 3, v4')
    a(f'v_add_u32 v9, {L_PC}, v9')
    a(f'v_lshrrev_b32 v10, 5, v1')
    a(f'v_lshlrev_b32 v10, 8, v10')
    a(f'v_bfe_u32 v11, v1, 4, 1')
    a(f'v_lshl_add_u32 v10, v11, 4, v10')
    a(f'v_lshl_add_u32 v10, v5, 5, v10')
    a(f's_lshl_b32 s6, s{S_W}, 9')
    a(f's_add_u32 s6, s6, {L_PS}')
    a(f'v_add_u32 v10, s6, v10')
    a(f'v_lshlrev_b32 v11, 5, v5')
    a(f'v_add_u32 v11, {L_PS}, v11')
    for i in range(14):
        a(f'ds_read_b64 v[{PC+2*i}:{PC+2*i+1}], v9 offset:{256*i}')
    poll(a, 'poll1', [f'global_load_dword v16, v12, {sp(S_WS)} sc1'], [16])
    a(f's_barrier')
    stamp(a, 11)
    for i in range(14):
        a(f'global_load_dwordx4 v[{RAW+4*i}:{RAW+4*i+3}], v6, {sp(S_WS)} sc1')
        if i < 13: a(f'v_add_u32 v6, {32*X2S}, v6')
    a(f'global_load_dwordx4 v[{XST}:{XST+3}], v7, {sp(S_WS)} sc1')
    a(f'v_add_u32 v7, {32*X2S}, v7')
    a(f'global_load_dwordx4 v[{XST+4}:{XST+7}], v7, {sp(S_WS)} sc1')
    a.wait_vm_tag('w1r2')
    emit(a, tr_list(w1dst, (V_A0, V_A1), range(12, 24), 12, 'w1tr'))
    emit(a, tr_list(w1dst, (V_X0, V_X1), range(24, 28), 24))
    a(f's_lshl_b32 s7, s{S_CH}, 6')
    a(f'v_xor_b32 v{V_A0}, s7, v{V_A0}')
    a(f'v_xor_b32 v{V_A1}, s7, v{V_A1}')
    a(f's_mul_i32 s6, s{S_W}, {W2H}')
    a(f's_add_u32 s6, s6, {L_H2}')
    a(f'v_xor_b32 v2, s7, v{V_T0}')
    a(f'v_xor_b32 v3, s7, v{V_T1}')
    a(f'v_add_u32 v{V_X0}, s6, v2')
    a(f'v_add_u32 v{V_X1}, s6, v3')
    a(f'v_add_u32 v12, {L_H2}, v{V_T0}')
    a(f'v_add_u32 v13, {L_H2}, v{V_T1}')
    d1 = dma_list(SRD2, V_D2, 896, 0, 12, SL, 0, 'w2a')
    a.wait_lg_tag('w1tr')
    for i in range(14):
        for k in range(4):
            x = F32 + 8 * i + 2 * k
            a(f'v_lshlrev_b32 v{x}, 16, v{RAW+4*i+k}')
            a(f'v_and_b32 v{x+1}, 0xffff0000, v{RAW+4*i+k}')
        for k in range(4):
            x = F32 + 8 * i + 2 * k
            if i == 0:
                a(f'v_pk_mul_f32 v[{QQ+2*k}:{QQ+2*k+1}], v[{x}:{x+1}], v[{x}:{x+1}]')
            elif i == 1:
                a(f'v_pk_add_f32 v[{SS+2*k}:{SS+2*k+1}], v[{x}:{x+1}], v[{x-8}:{x-7}]')
                a(f'v_pk_fma_f32 v[{QQ+2*k}:{QQ+2*k+1}], v[{x}:{x+1}], v[{x}:{x+1}], v[{QQ+2*k}:{QQ+2*k+1}]')
            else:
                a(f'v_pk_add_f32 v[{SS+2*k}:{SS+2*k+1}], v[{x}:{x+1}], v[{SS+2*k}:{SS+2*k+1}]')
                a(f'v_pk_fma_f32 v[{QQ+2*k}:{QQ+2*k+1}], v[{x}:{x+1}], v[{x}:{x+1}], v[{QQ+2*k}:{QQ+2*k+1}]')
        if i >= 10: dmas(a, d1, 1)
    stamp(a, 12)
    for i in range(8): a(f'v_permlane32_swap_b32 v{SS+i}, v{QQ+i}')
    for k in range(4): a(f'v_pk_add_f32 v[{SS+2*k}:{SS+2*k+1}], v[{SS+2*k}:{SS+2*k+1}], v[{QQ+2*k}:{QQ+2*k+1}]')
    for i in range(4): a(f'v_permlane16_swap_b32 v{SS+i}, v{SS+4+i}')
    for k in range(2): a(f'v_pk_add_f32 v[{SS+2*k}:{SS+2*k+1}], v[{SS+2*k}:{SS+2*k+1}], v[{SS+4+2*k}:{SS+5+2*k}]')
    dmas(a, d1, 1)
    for i in range(4): a(f'v_add_f32_dpp v{SS+i}, v{SS+i}, v{SS+i} row_ror:8 row_mask:0xf bank_mask:0xf')
    a(f'ds_write_b128 v10, v[{SS}:{SS+3}]')
    dmas(a, d1, 2)
    a.barrier()
    T = RAW
    def P(w, j):
        r = T + 16 * w + j
        return r if r < F32 else SS + (r - F32)
    for w in range(4):
        for st_ in range(2):
            for q in range(2):
                r = P(w, 8 * st_ + 4 * q)
                a(f'ds_read_b128 v[{r}:{r+3}], v11 offset:{w*512 + st_*256 + q*16}')
    a(f's_cmp_lg_u32 s2, 0')
    a(f's_cbranch_scc1 L_nobump')
    st = a.state()
    a(f'v_mov_b32 v2, s{S_E}')
    a(f'v_mov_b32 v3, {WS_EPOCH}')
    a(f'global_store_dword v3, v2, {sp(S_WS)} sc1')
    a.label('L_nobump')
    a.set_state(st)
    for k in range(8):
        a(f'v_pk_add_f32 v[{T+2*k}:{T+2*k+1}], v[{T+2*k}:{T+2*k+1}], v[{P(1,2*k)}:{P(1,2*k)+1}]')
    for k in range(8):
        a(f'v_pk_add_f32 v[{T+32+2*k}:{T+33+2*k}], v[{T+32+2*k}:{T+33+2*k}], v[{P(3,2*k)}:{P(3,2*k)+1}]')
    for k in range(8):
        a(f'v_pk_add_f32 v[{T+2*k}:{T+2*k+1}], v[{T+2*k}:{T+2*k+1}], v[{T+32+2*k}:{T+33+2*k}]')
    a(f's_mov_b32 s6, 0x3b124925')
    a(f's_mov_b32 s7, 0x3727c5ac')
    for k in range(8):
        a(f'v_pk_mul_f32 v[{T+2*k}:{T+2*k+1}], v[{T+2*k}:{T+2*k+1}], s[6:7] op_sel_hi:[1,0]')
    for k in range(4):
        a(f'v_pk_fma_f32 v[{T+8+2*k}:{T+9+2*k}], v[{T+2*k}:{T+2*k+1}], v[{T+2*k}:{T+2*k+1}], v[{T+8+2*k}:{T+9+2*k}] neg_lo:[1,0,0] neg_hi:[1,0,0]')
    for k in range(4):
        a(f'v_pk_add_f32 v[{T+8+2*k}:{T+9+2*k}], v[{T+8+2*k}:{T+9+2*k}], s[6:7] op_sel:[0,1] op_sel_hi:[1,1]')
    for k in range(8): a(f'v_max_f32 v{T+8+k}, s7, v{T+8+k}')
    for k in range(8): a(f'v_rsq_f32 v{T+8+k}, v{T+8+k}')
    dmas(a, d1, 1)
    for k in range(4):
        a(f'v_pk_mul_f32 v[{T+2*k}:{T+2*k+1}], v[{T+2*k}:{T+2*k+1}], v[{T+8+2*k}:{T+9+2*k}] neg_lo:[1,0] neg_hi:[1,0]')
    stamp(a, 13)
    for i in range(14):
        o = 32 + 4 * (i % 4)
        for k in range(4):
            x = F32 + 8 * i + 2 * k
            a(f'v_pk_fma_f32 v[{x}:{x+1}], v[{x}:{x+1}], v[{T+8+2*k}:{T+9+2*k}], v[{T+2*k}:{T+2*k+1}]')
        for k in range(4):
            x = F32 + 8 * i + 2 * k
            a(f'v_pk_fma_f32 v[{x}:{x+1}], v[{x}:{x+1}], v[{PC+2*i}:{PC+2*i+1}], v[{PC+2*i}:{PC+2*i+1}] op_sel:[0,0,1] op_sel_hi:[1,0,1]')
        for k in range(4):
            x = F32 + 8 * i + 2 * k
            a(f'v_cvt_pk_bf16_f32 v{o+k}, v{x}, v{x+1}')
        a(f'ds_write_b128 v8, v[{o}:{o+3}] offset:{4096*i}')
        if i % 2 == 1: dmas(a, d1, 1)
    a.barrier()
    stamp(a, 14)
    TMP = 48
    def silu_ops(acc, ct, jt, o):
        L = []
        for e in range(-2, 18):
            if 0 <= e + 2 < 16: L.append(f'v_exp_f32 v{TMP+(e+2)%8}, -v{acc+e+2}')
            if 0 <= e - 1 < 16:
                L.append(f'v_mul_f32 v{TMP+(e-1)%8}, v{TMP+(e-1)%8}, v{acc+e-1}')
            if 0 <= e + 1 < 16: L.append(f'v_add_f32 v{TMP+(e+1)%8}, 1.0, v{TMP+(e+1)%8}')
            if 0 <= e < 16: L.append(f'v_rcp_f32 v{TMP+e%8}, v{TMP+e%8}')
            if 0 <= e - 2 < 16 and (e - 2) % 2 == 1:
                p = (e - 2) // 2
                L.append(f'v_cvt_pk_bf16_f32 v{o+p}, v{TMP+(e-3)%8}, v{TMP+(e-2)%8}')
                if p % 4 == 3:
                    q = p // 4
                    L.append((f'global_store_dwordx4 v{10+jt}, v[{o+4*q}:{o+4*q+3}], {sp(S_WS)} offset:{ct*2048 + q*1024} {"" if OPT.get("e2") else "sc1"}', f'hst{jt}'))
        return L
    def bread1(jt, ks):
        r = BC + 4 * ks
        return [(f'ds_read_b64_tr_b16 v[{r+2*sec}:{r+2*sec+1}], v{12+jt} offset:{ks*2048 + sec*1024}', 'b1') for sec in range(2)]
    tiles = [(0, 0), (1, 0), (0, 1), (1, 1)]
    PRE = 6
    for ks in range(PRE): emit(a, bread1(0, ks))
    ad = []
    ad.append(f's_mul_i32 s10, s{S_TT}, {224*1024}')
    ad.append(f's_lshl_b32 s7, s{S_FT}, 14')
    ad.append(f's_add_u32 s6, s10, s7')
    ad.append(f's_lshl_b32 s7, s{S_W}, 12')
    ad.append(f's_add_u32 s6, s6, s7')
    ad.append(f's_add_u32 s6, s6, {WS_H}')
    ad.append(f'v_lshl_add_u32 v10, v1, 4, s6')
    ad.append(f'v_add_u32 v11, {112*1024}, v10')
    ad.append(f's_lshl_b32 s6, s{S_CW}, 2')
    ad.append(f's_add_u32 s6, s6, s{S_W}')
    ad.append(f's_lshl_b32 s6, s6, 6')
    ad.append(f's_add_u32 s6, s6, {WS_FLAG2}')
    ad.append(f'v_mov_b32 v80, s6')
    ad.append(f'v_add_u32 v81, {F2S}, v80')
    ad.append(f's_mul_i32 s6, s{S_TT}, 28')
    ad.append(f's_mul_i32 s7, s{S_W}, 7')
    ad.append(f's_add_u32 s6, s6, s7')
    ad.append(f's_lshl_b32 s6, s6, 6')
    ad.append(f's_add_u32 s6, s6, {WS_FLAG2}')
    ad.append([f's_add_u32 s32, s{S_WS}, s6', f's_addc_u32 s33, s{S_WS+1}, 0'])
    ad.append([f's_add_u32 s34, s32, {F2S}', f's_addc_u32 s35, s33, 0'])
    ad.append(f's_mul_i32 s7, s{S_W}, {28*1024}')
    ad.append(f's_add_u32 s6, s10, s7')
    ad.append(f's_add_u32 s6, s6, {WS_H + 4096}')
    ad.append(f'v_lshl_add_u32 v84, v1, 4, s6')
    for k in range(1, 4): ad.append(f'v_add_u32 v{84+k}, {8192*k}, v84')
    dC = dma_list(SRD2, V_D2, 896, 12, 6, W2H, L_H2, 'w2c')
    if OPT.get('t2', 1):
        ad.append(f's_mul_i32 s6, s{S_W}, {448*896}')
        ad.append(f's_mul_i32 s7, s{S_LOC}, 5120')
        ad.append(f's_add_u32 s6, s6, s7')
        ad.append(f's_add_u32 s6, s6, {288*896}')
        ad.append(f'v_min_u32 v90, 39, v1')
        ad.append(f'v_lshl_add_u32 v90, v90, 7, s6')
        ad.append(f'global_load_dword v91, v90, {sp(S_W2)}')
    nb1 = 0
    silu = []
    for ti, (ct, jt) in enumerate(tiles):
        acc = 16 + 16 * (ti & 1)
        if ti > 0:
            pc, pj = tiles[ti - 1]
            silu = silu_ops(16 + 16 * ((ti - 1) & 1), pc, pj, 64 + 8 * ((ti - 1) & 1))
        for ks in range(28):
            A = (ct * 28 + ks) * 4; r = BC + 4 * ks
            if ti == 0 and ks % 2 == 0 and ks + 1 < 28:
                want = {f'v{BC+4*(ks+1)+3}'}
                idx = [i for i, (w, k, t) in enumerate(a.lgq) if w & want]
                if idx: a.wait(lgkm=len(a.lgq) - 1 - idx[-1])
            if ti == 3 and ks == 0:
                a.barrier()
            a(f'v_mfma_f32_32x32x16_bf16 v[{acc}:{acc+15}], a[{A}:{A+3}], v[{r}:{r+3}], ' + ('0' if ks == 0 else f'v[{acc}:{acc+15}]'))
            budget = 6
            if ti == 0:
                if ks + PRE < 28:
                    emit(a, bread1(0, ks + PRE))
                    if d1 and ks % 2 == 0: dmas(a, d1, 1)
                    else: fill(a, ad, 2)
                else: fill(a, ad, 6)
                continue
            if ti in (1, 2) and nb1 < 28:
                lim = ks if ti == 1 else 27
                rate = 1 if (ks < 3 or ti == 2 or ks % 2 == 0) else 0
                if rate and nb1 <= lim:
                    emit(a, bread1(1, nb1)); nb1 += 1; budget -= 4
            if dC and ti == 3 and (ks % 2 == 1 or ks < 3):
                n0 = a.count; dmas(a, dC, 1); budget -= a.count - n0
            if silu and ks >= 3: fill(a, silu, 1000 if ks == 27 else budget)
        assert not silu
    assert nb1 == 28 and not d1 and not dC and not ad
    a.wait_vm_tag('hst0')
    emit(a, flag_ops(80, 239))
    emit(a, silu_ops(32, 1, 1, 72))
    stamp(a, 15)

def spoll_issue(base):
    return [f's_load_dword s{18+k}, s[{base}:{base+1}], {64*k} glc' for k in range(7)]
def spoll_check(a, name, base):
    def chk():
        a(f's_xor_b32 s18, s18, s{S_TAG}')
        for k in range(1, 7):
            a(f's_xor_b32 s{18+k}, s{18+k}, s{S_TAG}')
            a(f's_or_b32 s18, s18, s{18+k}')
        a(f's_cbranch_scc0 L_{name}_done')
    a(f's_mov_b32 s8, 0')
    chk()
    st = a.state()
    a.label(f'L_{name}')
    a(f's_sleep {OPT.get("slp", 4)}')
    emit(a, spoll_issue(base))
    chk()
    a(f's_add_u32 s8, s8, 1')
    a(f's_cmp_lt_u32 s8, 0x40000')
    a(f's_cbranch_scc1 L_{name}')
    a.label(f'L_{name}_done')
    h = a.hist; a.set_state(st); a.hist = h

def phase3(a):
    def hload(jt, ks):
        return f'global_load_dwordx4 v[{BC+4*ks}:{BC+4*ks+3}], v{84+4*jt+ks//8}, {sp(S_WS)} offset:{(ks%8)*1024-4096} sc1'
    a.wait_vm_tag('w2a')
    emit(a, tr_list(w2dst, (V_A0, V_A1), range(0, 6), 0))
    a(f'ds_write_b128 v8, v[{XST}:{XST+3}] offset:{L_XS - L_H2}')
    a(f'ds_write_b128 v8, v[{XST+4}:{XST+7}] offset:{L_XS - L_H2 + 4096}')
    emit(a, spoll_issue(32))
    emit(a, tr_list(w2dst, (V_A0, V_A1), range(6, 10), 0))
    QST(a, 6)
    spoll_check(a, 'poll2', 32)
    PST(a, 4)
    PD = OPT.get('pd', 12)
    for ks in range(PD): a(hload(0, ks))
    QST(a, 7)
    t3 = tr_list(w2dst, (V_A0, V_A1), range(10, 12), 0) + [('W', 'w2c')] + tr_list(w2dst, (V_X0, V_X1), range(12, 18), 12)
    fill(a, t3, OPT.get('t3pre', 32))
    a.wait_vm_tag('hst1')
    QST(a, 8)
    emit(a, flag_ops(81, 239))
    dD = dma_list(SRD2, V_D2, 896, 18, 10, SL, 0, 'w2d')
    t4 = [('W', 'w2d')] + tr_list(w2dst, (V_A0, V_A1), range(18, 28), 18)
    PST(a, 0)
    sh = []
    for k in range(4): sh.append(f'v_add_u32 v{88+k}, {112*1024}, v{84+k}')
    for u in range(2):
        for v in range(2):
            sh.append(f's_xor_b32 s6, s{S_CH}, {u}')
            sh.append(f's_lshl_b32 s6, s6, 3')
            sh.append(f's_add_u32 s6, s6, s{S_W}')
            sh.append(f's_lshl_b32 s6, s6, 12')
            sh.append(f's_add_u32 s6, s6, {L_RED + v*16384}')
            sh.append(f'v_lshl_add_u32 v{4+2*u+v}, v1, 4, s6')
    sh.append(f's_lshl_b32 s6, s{S_W}, 14')
    sh.append(f'v_lshl_add_u32 v9, v1, 4, s6')
    sh.append(f's_lshl_b32 s7, s{S_CH}, 7')
    sh.append(f's_add_u32 s7, s7, {L_GB}')
    sh.append(f'v_lshrrev_b32 v14, 5, v1')
    sh.append(f'v_lshl_add_u32 v15, v14, 4, s7')
    sh.append(f's_lshl_b32 s7, s{S_PAR}, 6')
    sh.append(f'v_xor_b32 v94, s7, v{V_T0}')
    sh.append(f's_lshl_b32 s7, s{S_CH}, 12')
    sh.append(f's_add_u32 s7, s7, {L_XS}')
    sh.append(f'v_add_u32 v94, s7, v94')
    sh.append(f's_lshl_b32 s10, s{S_TT}, 6')
    sh.append(f's_lshl_b32 s7, s{S_PAR}, 5')
    sh.append(f's_add_u32 s10, s10, s7')
    sh.append(f's_mul_i32 s10, s10, 896')
    sh.append(f's_lshl_b32 s7, s{S_FT}, 7')
    sh.append(f's_add_u32 s10, s10, s7')
    sh.append(f's_lshl_b32 s7, s{S_CH}, 6')
    sh.append(f's_add_u32 s10, s10, s7')
    sh.append(f'v_and_b32 v95, 31, v1')
    sh.append(f'v_mul_u32_u24 v95, 896, v95')
    sh.append(f'v_lshl_add_u32 v95, v14, 4, v95')
    sh.append(f'v_add_u32 v95, s10, v95')
    def mf(u, v, ks):
        acc = 16 + 16 * (2 * u + v); k, A = w2dst(u, ks)
        a(f'v_mfma_f32_32x32x16_bf16 v[{acc}:{acc+15}], a[{A}:{A+3}], v[{BC+4*ks}:{BC+4*ks+3}], ' + ('0' if ks == 0 else f'v[{acc}:{acc+15}]'))
    for ks in range(28):
        if ks == 28 - PD - OPT.get('p1d', 4): emit(a, spoll_issue(34))
        if ks == 28 - PD:
            PST(a, 1)
            spoll_check(a, 'poll3', 34)
        for u in range(2):
            mf(u, 0, ks)
            if u == 1: a(hload(0, ks + PD) if ks + PD < 28 else hload(1, ks + PD - 28))
            n0 = a.count
            if dD: dmas(a, dD, 1)
            b = 5 - (a.count - n0)
            if t3: fill(a, t3, b)
            elif ks >= 14 and t4: fill(a, t4, 6)
            elif sh: fill(a, sh, b)
    assert not t4 and not sh and not t3 and not dD
    a.barrier()
    late = []
    for u in range(2):
        for q in range(4): late.append(f'ds_write_b128 v{4+2*u}, v[{16+32*u+4*q}:{19+32*u+4*q}] offset:{1024*q}')
    for g in range(4):
        late.append(f'ds_read_b128 v[{96+4*g}:{99+4*g}], v15 offset:{32*g}')
        late.append(f'ds_read_b64_tr_b16 v[{224+2*g}:{225+2*g}], v94 offset:{1024*g}')
    for g in range(4):
        for q in range(2):
            late.append(f'v_lshlrev_b32 v{16+4*g+2*q}, 16, v{224+2*g+q}')
            late.append(f'v_and_b32 v{17+4*g+2*q}, 0xffff0000, v{224+2*g+q}')
    for ks in range(28):
        for u in range(2):
            mf(u, 1, ks)
            if u == 1 and ks + PD < 28: a(hload(1, ks + PD))
            if ks >= 2: fill(a, late, 4)
    assert not late
    PST(a, 2)
    for u in (1, 0):
        for q in range(4): a(f'ds_write_b128 v{5+2*u}, v[{32+32*u+4*q}:{35+32*u+4*q}] offset:{1024*q}')
    a.barrier()
    R = 112
    for k in range(4):
        for q in range(4):
            a(f'ds_read_b128 v[{R+16*k+4*q}:{R+16*k+4*q+3}], v9 offset:{4096*k + 1024*q}')
    for p in range(8): a(f'v_pk_add_f32 v[{R+2*p}:{R+2*p+1}], v[{R+2*p}:{R+2*p+1}], v[{R+16+2*p}:{R+17+2*p}]')
    for p in range(8): a(f'v_pk_add_f32 v[{R+32+2*p}:{R+33+2*p}], v[{R+32+2*p}:{R+33+2*p}], v[{R+48+2*p}:{R+49+2*p}]')
    for p in range(8): a(f'v_pk_add_f32 v[{R+2*p}:{R+2*p+1}], v[{R+2*p}:{R+2*p+1}], v[{R+32+2*p}:{R+33+2*p}]')
    for p in range(8):
        a(f'v_pk_fma_f32 v[{R+2*p}:{R+2*p+1}], v[{R+2*p}:{R+2*p+1}], v[{96+2*p}:{97+2*p}], v[{16+2*p}:{17+2*p}]')
    for p in range(8):
        a(f'v_cvt_pk_bf16_f32 v{176+p}, v{R+2*p}, v{R+2*p+1}')
    for q in range(2):
        a(f'v_permlane32_swap_b32 v{176+4*q}, v{178+4*q}')
        a(f'v_permlane32_swap_b32 v{177+4*q}, v{179+4*q}')
    for q in range(2):
        a(f'global_store_dwordx4 v95, v[{176+4*q}:{179+4*q}], {sp(S_OUT)} offset:{32*q}')
    PST(a, 3)

def PST(a, k):
    if PROF and OPT.get('late'):
        a(f's_memtime s[{68+2*(k+1)}:{69+2*(k+1)}]')

def QST(a, k):
    if PROF and OPT.get('late') == 2:
        a(f's_memtime s[{68+2*k}:{69+2*k}]')

def build(prof=False):
    global PROF
    PROF = prof
    a = Asm()
    setup(a)
    stamp(a, 0)
    if OPT.get('dbgout'):
        a(f's_memrealtime s[98:99]')
        a(f's_mov_b32 s101, s98')
    a(f's_cmp_ge_u32 s{S_LOC}, 28')
    a(f's_cbranch_scc1 L_spare')
    st = a.state()
    phase1(a)
    phase2(a)
    phase3(a)
    stamps_out(a)
    a.label('L_end')
    a('s_endpgm')
    a.set_state(st)
    spare(a)
    a.label('L_codeend')
    hdr = f"""; @launch grid=(256,1,1) block=(256,1,1) lds={LDS_TOTAL}
.amdgcn_target "amdgcn-amd-amdhsa--gfx950"
.text
.globl {KN}_kernel
.p2align 8
.type {KN}_kernel,@function
{KN}_kernel:
"""
    ftr = f""".section .rodata,"a"
.p2align 6
.amdhsa_kernel {KN}_kernel
  .amdhsa_next_free_vgpr 512
  .amdhsa_next_free_sgpr 102
  .amdhsa_accum_offset 256
  .amdhsa_group_segment_fixed_size 0
  .amdhsa_kernarg_size 136
  .amdhsa_user_sgpr_count 2
  .amdhsa_user_sgpr_kernarg_segment_ptr 1
  .amdhsa_system_sgpr_workgroup_id_x 1
.end_amdhsa_kernel
"""
    sys.stderr.write(f'instructions {a.count} nop states {a.nops}\n')
    return hdr + a.text() + ftr

if __name__ == '__main__':
    ap = argparse.ArgumentParser()
    ap.add_argument('out'); ap.add_argument('--prof', action='store_true'); ap.add_argument('-o', action='append', default=[])
    args = ap.parse_args()
    for kv in args.o:
        k, v = kv.split('='); OPT[k] = int(v)
    t = build(args.prof)
    if OPT.get('align', 1):
        import align
        t, w_, n_ = align.align(t)
        sys.stderr.write(f'aligned: widened {w_} nops {n_}\n')
    open(args.out, 'w').write(t)
```

```python
import sys, argparse
from asmlib import Asm
KN = 'adaLN_cond__ssm_conv_s4__dense_activation_silu__prompt'

WS_EPOCH = 0
WS_STATS = 0x210000
WS_XT    = 0xA00000
WS_MODG  = 0x5000
WS_MODA  = 0x1000
WS_FLAG1 = 0x10000
WS_FLAG2 = 0x1E000
F2S = 0xE000
WS_PROF  = 0x220000
WS_X2T   = 0x40000
X2S = 4224; XTS = 8320
WS_H     = 0x280000

KG_ROW = 1040; KG_CH = 53 * KG_ROW
L_B    = 2 * KG_CH
L_T    = L_B; T_ROW = 72; T_CH = 32 * T_ROW
L_KC   = L_T + 2 * T_CH
KC_O = 4160; KC_CH = 8320
L_Y    = L_B; Y_W = 10240
L_UR   = L_B + 4 * Y_W; UR_CH = 4608
LDS_TOTAL = 163840
L_XT = 131584
SL = 24576
L_PC = 4 * SL
L_PS = L_PC + 3584
L_GB = L_PS + 2048
L_H2 = 106496
W2H = 12288
L_XS = L_H2 + 4 * W2H
L_RED = 0

S_AU, S_ARE, S_AIM, S_BRE, S_BIM, S_CRE, S_CIM, S_LDT = [16 + 2 * i for i in range(8)]
S_DSK, S_BX, S_W1, S_W2, S_C, S_WM, S_OUT, S_DBG = [32 + 2 * i for i in range(8)]
S_WS = 48
S_TAG, S_E, S_XCD, S_LOC, S_CW, S_TT, S_FT, S_W = 50, 51, 52, 53, 54, 55, 56, 57
S_LDTV, S_DSKV = 58, 59
SRD1, SRD2 = 60, 64
S_R0, S_CH, S_PAR = 4, 5, 3
def sp(i): return f's[{i}:{i+1}]'
V_T0, V_T1 = 240, 241
V_A0, V_A1 = 242, 243
V_X0, V_X1 = 244, 245
V_D1 = 246
V_D2 = 250

PROF = False
OPT = {}
STAMPS = []
def stamp(a, idx):
    if not PROF: return
    if OPT.get('early') and idx >= 8: return
    assert idx < 16 and idx not in STAMPS
    a(f's_memtime s[{68+2*idx}:{69+2*idx}]')
    STAMPS.append(idx)
def stamps_out(a):
    if not PROF: return
    if OPT.get('dbgout'):
        a(f's_memrealtime s[14:15]')
        a(f's_cmp_lg_u32 s2, {OPT["dbgout"]-1}')
        a(f's_cbranch_scc1 L_end')
        a(f's_cmp_lg_u32 s{S_W}, 0')
        a(f's_cbranch_scc1 L_end')
        a(f'v_mov_b32 v254, 0')
        a(f's_sub_u32 s14, s14, s12') if False else None
        for idx in sorted(STAMPS):
            if idx == 0: a(f's_sub_u32 s6, s14, s101')
            else: a(f's_sub_u32 s6, s{68+2*idx}, s68')
            a(f'v_mov_b32 v255, s6')
            a(f'global_store_dword v254, v255, {sp(S_DBG)} offset:{idx*4}')
        return
    a(f'v_mov_b32 v254, s100')
    for idx in STAMPS:
        a(f'v_mov_b32 v255, s{68+2*idx}')
        a(f'global_store_dword v254, v255, {sp(S_WS)} offset:{idx*4}')

def EST(a, k):
    if PROF and OPT.get('early'):
        a(f's_memtime s[{68+2*k}:{69+2*k}]')
        if k not in STAMPS: STAMPS.append(k)

def emit1(a, x):
    if isinstance(x, list):
        for y in x: a(y)
        return len(x)
    if isinstance(x, tuple):
        if x[0] == 'W': a.wait_vm_tag(x[1]); return 0
        if x[0] == 'L': a.wait_lg_tag(x[1]); return 0
        a(x[0], tag=x[1]); t = x[0]
    else:
        a(x); t = x
    if t.startswith(('v_exp', 'v_rcp', 'v_rsq', 'v_sin', 'v_cos', 'v_sqrt')): return 2
    if t.startswith('ds_write_b128'): return 7
    if t.startswith('ds_write_b64'): return 5
    if t.startswith('ds_read'): return 2
    return 1
def emit(a, L):
    for x in L: emit1(a, x)
def fill(a, L, budget):
    c = 0
    while L and c < budget: c += emit1(a, L.pop(0))

def cmul(d, x, y, t):
    return [f'v_pk_mul_f32 v[{t}:{t+1}], v[{x}:{x+1}], v[{y}:{y+1}] op_sel:[0,0] op_sel_hi:[1,0]',
            f'v_pk_fma_f32 v[{d}:{d+1}], v[{x}:{x+1}], v[{y}:{y+1}], v[{t}:{t+1}] op_sel:[1,1,0] op_sel_hi:[0,1,1] neg_lo:[1,0,0]']

def setup(a):
    a(f's_cmp_ge_u32 s2, 256')
    a(f's_cbranch_scc1 L_end')
    EST(a, 8)
    a(f's_load_dwordx16 s[16:31], s[0:1], 0')
    if OPT.get('cpf', 32):
        a(f's_cmp_ge_u32 s2, {OPT.get("cpf", 32)}')
        a(f's_cbranch_scc1 L_nocpf')
        a(f's_getpc_b64 s[14:15]')
        a.label('L_pc')
        a(f'v_lshlrev_b32 v2, 7, v0')
        a(f'v_min_u32 v2, L_codeend-L_pc-4, v2')
        a(f'global_load_dword v255, v2, s[14:15]')
        a(f'v_add_u32 v2, 32768, v2')
        a(f'v_min_u32 v2, L_codeend-L_pc-4, v2')
        a(f'global_load_dword v254, v2, s[14:15]')
        a.vmq = []
        a.label('L_nocpf')
    a(f's_load_dwordx16 s[32:47], s[0:1], 64')
    a(f's_load_dwordx2 {sp(S_WS)}, s[0:1], 128')
    a(f'v_lshrrev_b32 v2, 6, v0')
    a(f'v_and_b32 v1, 63, v0')
    a(f'v_readfirstlane_b32 s{S_W}, v2')
    a(f's_and_b32 s{S_XCD}, s2, 7')
    a(f's_lshr_b32 s{S_LOC}, s2, 3')
    a(f's_mul_i32 s{S_CW}, s{S_XCD}, 28')
    a(f's_add_u32 s{S_CW}, s{S_CW}, s{S_LOC}')
    if PROF:
        a(f's_lshl_b32 s100, s2, 2')
        a(f's_add_u32 s100, s100, s{S_W}')
        a(f's_lshl_b32 s100, s100, 6')
        a(f's_add_u32 s100, s100, {WS_PROF}')
    a(f's_lshr_b32 s{S_CH}, s{S_W}, 1')
    a(f's_and_b32 s{S_PAR}, s{S_W}, 1')
    a(f's_mul_i32 s6, s{S_LOC}, 37')
    a(f's_lshr_b32 s6, s6, 8')
    a(f's_mul_i32 s7, s6, 7')
    a(f's_sub_u32 s{S_FT}, s{S_LOC}, s7')
    a(f's_lshl_b32 s{S_TT}, s{S_XCD}, 2')
    a(f's_add_u32 s{S_TT}, s{S_TT}, s6')

def stats_loads(a):
    a(f's_lshl_b32 s{S_R0}, s2, 3')
    a(f's_lshl_b32 s6, s{S_CH}, 2')
    a(f's_add_u32 s{S_R0}, s{S_R0}, s6')
    a(f's_mul_i32 s6, s{S_R0}, 896')
    a(f'v_lshrrev_b32 v2, 5, v1')
    a(f'v_mul_u32_u24 v2, {1792 - 1024}, v2')
    a(f'v_lshl_add_u32 v3, v1, 5, s6')
    a(f'v_add_u32 v3, v2, v3')
    for i in range(4, 20): a(f'v_mov_b32 v{i}, 0')
    a(f's_mov_b32 exec_lo, 0x0fffffff')
    a(f's_mov_b32 exec_hi, 0x0fffffff')
    a(f'global_load_dwordx4 v[4:7], v3, {sp(S_AU)}')
    a(f'global_load_dwordx4 v[8:11], v3, {sp(S_AU)} offset:16')
    a(f'global_load_dwordx4 v[12:15], v3, {sp(S_AU)} offset:896')
    a(f'global_load_dwordx4 v[16:19], v3, {sp(S_AU)} offset:912')
    a(f's_mov_b64 exec, -1')

def tag_setup(a):
    a(f's_add_u32 s{S_E}, s{S_E}, 1')
    a(f's_mul_i32 s{S_TAG}, s{S_E}, 0x9E3779B1')
    a(f's_add_u32 s{S_TAG}, s{S_TAG}, 0x7F4A7C15')

def stats(a):
    a(f'v_mov_b32 v2, 0x3f803f80')
    for i in range(8):
        for r, base in ((0, 4), (1, 12)):
            s, q = 20 + 2 * r, 21 + 2 * r
            a(f'v_dot2_f32_bf16 v{s}, v{base+i}, v2, ' + ('0' if i == 0 else f'v{s}'))
            a(f'v_dot2_f32_bf16 v{q}, v{base+i}, v{base+i}, ' + ('0' if i == 0 else f'v{q}'))
    for ctl in ('row_shr:1 row_mask:0xf bank_mask:0xf bound_ctrl:0', 'row_shr:2 row_mask:0xf bank_mask:0xf bound_ctrl:0',
                'row_shr:4 row_mask:0xf bank_mask:0xf bound_ctrl:0', 'row_shr:8 row_mask:0xf bank_mask:0xf bound_ctrl:0',
                'row_bcast:15 row_mask:0xa bank_mask:0xf'):
        for v in (20, 21, 22, 23):
            a(f'v_add_f32_dpp v{v}, v{v}, v{v} {ctl}')
    a(f's_mov_b32 s8, 0x3b124925')
    a(f'v_pk_mul_f32 v[20:21], v[20:21], s[8:9] op_sel_hi:[1,0]')
    a(f'v_pk_mul_f32 v[22:23], v[22:23], s[8:9] op_sel_hi:[1,0]')
    a(f's_mov_b32 s8, 0x3727c5ac')
    a(f'v_fma_f32 v21, -v20, v20, v21')
    a(f'v_fma_f32 v23, -v22, v22, v23')
    a(f'v_max_f32 v21, 0, v21')
    a(f'v_max_f32 v23, 0, v23')
    a(f'v_cvt_pk_bf16_f32 v4, v21, v23')
    a(f'v_lshrrev_b32 v2, 5, v1')
    a(f'v_lshlrev_b32 v21, 16, v4')
    a(f'v_and_b32 v23, 0xffff0000, v4')
    a(f'v_add_f32 v21, s8, v21')
    a(f'v_add_f32 v23, s8, v23')
    a(f'v_cvt_pk_bf16_f32 v4, v21, v23')
    a(f's_lshl_b32 s8, s2, 4')
    a(f's_lshl_b32 s9, s{S_CH}, 14')
    a(f's_add_u32 s8, s8, s9')
    a(f'v_lshlrev_b32 v21, 16, v4')
    a(f'v_and_b32 v23, 0xffff0000, v4')
    a(f'v_sqrt_f32 v21, v21')
    a(f'v_sqrt_f32 v23, v23')
    a(f's_add_u32 s8, s8, {WS_STATS}')
    a(f'v_cvt_pk_bf16_f32 v8, v20, v22')
    a(f'v_cvt_pk_bf16_f32 v4, v21, v23')
    a(f'v_lshl_add_u32 v2, v2, 13, s8')
    a(f'v_add_u32 v3, 4096, v2')
    a(f'v_and_b32 v5, 0xffff0000, v4')
    a(f'v_lshlrev_b32 v4, 16, v4')
    a(f'v_rcp_f32 v5, v5')
    a(f'v_rcp_f32 v4, v4')
    a(f'v_and_b32 v9, 0xffff0000, v8')
    a(f'v_lshlrev_b32 v8, 16, v8')
    for r in (6, 7, 10, 11): a(f'v_mov_b32 v{r}, s{S_TAG}')
    a(f'v_pk_mul_f32 v[8:9], v[8:9], v[4:5] neg_lo:[1,0] neg_hi:[1,0]')
    a(f's_mov_b32 exec_lo, 0x80000000')
    a(f's_mov_b32 exec_hi, 0x80000000')
    a(f'global_store_dwordx4 v2, v[4:7], {sp(S_WS)} sc1')
    a(f'global_store_dwordx4 v3, v[8:11], {sp(S_WS)} sc1')
    a(f's_mov_b64 exec, -1')

def xt_loads(a):
    a(f's_lshl_b32 s6, s{S_TT}, 1')
    a(f's_add_u32 s6, s6, s{S_CH}')
    a(f's_mul_i32 s6, s6, {32*896}')
    a(f's_lshl_b32 s7, s{S_FT}, 1')
    a(f's_add_u32 s7, s7, s{S_PAR}')
    a(f's_lshl_b32 s7, s7, 6')
    a(f's_add_u32 s6, s6, s7')
    a(f'v_lshrrev_b32 v33, 2, v1')
    a(f'v_mul_u32_u24 v33, 896, v33')
    a(f'v_and_b32 v34, 3, v1')
    a(f'v_lshl_add_u32 v33, v34, 4, v33')
    a(f'v_add_u32 v33, s6, v33')
    a(f's_lshl_b32 s7, s{S_W}, 11')
    a(f's_add_u32 m0, s7, {L_XT}')
    a(f'v_add_u32 v34, {16*896 - 1024}, v33')
    a(f'global_load_lds_dwordx4 v33, {sp(S_AU)}', tag='xt')
    a(f'global_load_lds_dwordx4 v34, {sp(S_AU)} offset:1024', tag='xt')

def xt_addr(a):
    a(f'v_lshrrev_b32 v36, 2, v1')
    a(f'v_bfe_u32 v37, v1, 1, 1')
    a(f'v_lshl_add_u32 v36, v37, 4, v36')
    a(f'v_lshlrev_b32 v36, 6, v36')
    a(f'v_and_b32 v37, 1, v1')
    a(f'v_lshl_add_u32 v36, v37, 3, v36')
    a(f's_lshl_b32 s7, s{S_W}, 11')
    a(f's_add_u32 s7, s7, {L_XT}')
    a(f'v_add_u32 v36, s7, v36')
    a(f's_lshl_b32 s6, s{S_FT}, 1')
    a(f's_add_u32 s6, s6, s{S_PAR}')
    a(f's_mul_i32 s6, s6, {32*XTS}')
    a(f's_lshl_b32 s7, s{S_TT}, 1')
    a(f's_add_u32 s7, s7, s{S_CH}')
    a(f's_lshl_b32 s7, s7, 7')
    a(f's_add_u32 s6, s6, s7')
    a(f's_add_u32 s6, s6, {WS_XT}')
    a(f'v_and_b32 v37, 7, v1')
    a(f'v_mul_u32_u24 v37, {XTS}, v37')
    a(f'v_and_b32 v38, 48, v1')
    a(f'v_add3_u32 v37, v37, v38, s6')
    a(f'v_and_b32 v38, 8, v1')
    a(f'v_lshl_add_u32 v37, v38, 3, v37')

def xt_publish(a, R):
    a.wait_vm_tag('xt')
    for q in range(4): a(f'ds_read_b64_tr_b16 v[{R+4*q}:{R+4*q+1}], v36 offset:{16*q}')
    for q in range(4): a(f'v_mov_b32 v{R+4*q+3}, s{S_TAG}')
    for q in range(4):
        a(f'v_mov_b32 v{R+4*q+2}, v{R+4*q+1}')
        a(f'v_mov_b32 v{R+4*q+1}, s{S_TAG}')
        a(f'global_store_dwordx4 v37, v[{R+4*q}:{R+4*q+3}], {sp(S_WS)} sc1')
        if q < 3: a(f'v_add_u32 v37, {8*XTS}, v37')

def odd_only(a, name, fn):
    a(f's_cmp_eq_u32 s{S_PAR}, 0')
    a(f's_cbranch_scc1 L_{name}')
    st = a.state()
    fn(a)
    a.label(f'L_{name}')
    return st

def spare(a):
    a.label('L_spare')
    a(f's_sub_u32 s12, s{S_LOC}, 28')
    a(f's_lshl_b32 s10, s12, 3')
    a(f's_add_u32 s10, s10, s{S_XCD}')
    a(f's_load_dword s{S_E}, {sp(S_WS)}, {WS_EPOCH}')
    odd_only(a, 'sp_ld', stats_loads)
    a(f'v_min_u32 v24, 223, v0')
    a(f'v_lshlrev_b32 v24, 2, v24')
    a(f'global_load_dword v25, v24, {sp(S_C)}')
    a(f's_cmp_ge_u32 s10, 28')
    a(f's_cbranch_scc1 L_spare_idle')
    st = a.state()
    a(f'v_lshrrev_b32 v29, 3, v1')
    a(f'v_mul_u32_u24 v26, 7, v29')
    a(f's_and_b32 s13, s10, 1')
    a(f's_mul_i32 s11, s13, 224')
    a(f's_mul_i32 s14, s{S_W}, 56')
    a(f's_add_u32 s11, s11, s14')
    a(f'v_add_u32 v26, s11, v26')
    a(f'v_mul_u32_u24 v27, 5376, v26')
    a(f'v_and_b32 v28, 7, v1')
    a(f'v_lshlrev_b32 v28, 4, v28')
    a(f's_lshr_b32 s11, s10, 1')
    a(f's_lshl_b32 s11, s11, 7')
    a(f'v_add3_u32 v27, v27, v28, s11')
    for i in range(7):
        a(f'global_load_dwordx4 v[{64+4*i}:{67+4*i}], v27, {sp(S_WM)}')
        if i < 6: a(f'v_add_u32 v27, 5376, v27')
    EST(a, 9)
    a(f'v_mul_u32_u24 v30, 14, v29')
    a(f's_mul_i32 s11, s{S_W}, 112')
    a(f'v_add_u32 v30, s11, v30')
    a(f'v_mul_u32_u24 v31, 5376, v30')
    a(f's_lshl_b32 s11, s10, 7')
    a(f's_add_u32 s11, s11, {14*128}')
    a(f'v_add3_u32 v31, v31, v28, s11')
    a(f'v_lshlrev_b32 v26, 2, v26')
    a(f'v_lshlrev_b32 v30, 2, v30')
    a(f'v_lshrrev_b32 v29, 3, v0')
    a(f'v_lshlrev_b32 v29, 8, v29')
    a(f'v_lshl_add_u32 v29, v28, 1, v29')
    a(f'v_and_b32 v200, 31, v1')
    a(f'v_lshlrev_b32 v201, 3, v200')
    a(f'v_lshrrev_b32 v202, 5, v1')
    a(f'v_lshl_add_u32 v202, v202, 12, v201')
    a(f'v_lshlrev_b32 v34, 16, v25')
    a(f'v_and_b32 v35, 0xffff0000, v25')
    a(f's_mov_b32 s8, 0xbfb8aa3b')
    a(f'v_mul_f32 v32, s8, v34')
    a(f'v_mul_f32 v33, s8, v35')
    a(f'v_exp_f32 v32, v32')
    a(f'v_exp_f32 v33, v33')
    a(f'v_add_f32 v32, 1.0, v32')
    a(f'v_add_f32 v33, 1.0, v33')
    a(f'v_rcp_f32 v32, v32')
    a(f'v_rcp_f32 v33, v33')
    a(f'v_mul_f32 v34, v34, v32')
    a(f'v_mul_f32 v35, v35, v33')
    a(f'v_cvt_pk_bf16_f32 v34, v34, v35')
    a(f'v_and_b32 v32, 0xffff, v34')
    a(f'v_lshrrev_b32 v33, 16, v34')
    a(f'v_lshlrev_b32 v24, 1, v24')
    a(f'ds_write_b64 v24, v[32:33]')
    EST(a, 1)
    tag_setup(a)
    EST(a, 2)
    a.barrier()
    EST(a, 3)
    for i in range(7): a(f'ds_read_b32 v{34+i}, v26 offset:{4*i}')
    acc = 176
    def dots(a, n):
        for i in range(n): a(f'v_lshlrev_b32 v{48+i}, 16, v{34+i}')
        for i in range(n):
            for k in range(4):
                w = 64 + 4 * i + k
                a(f'v_dot2_f32_bf16 v{acc+2*k}, v{w}, v{34+i}, ' + ('0' if i == 0 else f'v{acc+2*k}'))
                a(f'v_dot2_f32_bf16 v{acc+2*k+1}, v{w}, v{48+i}, ' + ('0' if i == 0 else f'v{acc+2*k+1}'))
    a(f's_cmp_eq_u32 s{S_PAR}, 0')
    a(f's_cbranch_scc1 L_sp_even')
    st4 = a.state()
    stats(a)
    EST(a, 10)
    dots(a, 7)
    a(f's_branch L_sp_join')
    a.label('L_sp_even')
    a.set_state(st4)
    dots(a, 7)
    a.label('L_sp_join')
    a.vmq = []; a.lgq = []; a.hist = []
    for task, n in ((0, 7), (1, 14)):
        if task == 1:
            for i in range(14):
                a(f'global_load_dwordx4 v[{64+4*i}:{67+4*i}], v31, {sp(S_WM)}')
                if i < 13: a(f'v_add_u32 v31, 5376, v31')
            for i in range(7): a(f'ds_read_b64 v[{34+2*i}:{35+2*i}], v30 offset:{8*i}')
            dots(a, 14)
        if task == 0: EST(a, 11)
        a(f'ds_write_b128 v29, v[{acc}:{acc+3}] offset:{2048+8192*task}')
        a(f'ds_write_b128 v29, v[{acc+4}:{acc+7}] offset:{2048+8192*task+16}')
        a.barrier()
        if task == 0: EST(a, 12)
        lab = f'L_spare_red{task}'
        a(f's_cmp_lg_u32 s{S_W}, 0')
        a(f's_cbranch_scc1 {lab}')
        st2 = a.state()
        for i in range(16):
            a(f'ds_read_b64 v[{204+2*i}:{205+2*i}], v202 offset:{2048+8192*task+256*i}')
        for i in range(1, 16):
            a(f'v_pk_add_f32 v[204:205], v[204:205], v[{204+2*i}:{205+2*i}]')
        a(f'v_mov_b32 v206, v204')
        a(f'v_mov_b32 v207, v205')
        a(f'v_permlane32_swap_b32 v204, v206')
        a(f'v_permlane32_swap_b32 v205, v207')
        a(f'v_pk_add_f32 v[204:205], v[204:205], v[206:207]')
        if task == 0:
            a(f'v_mov_b32 v206, s{S_TAG}')
            a(f'v_mov_b32 v207, s{S_TAG}')
            a(f's_mul_i32 s11, s13, 7168')
            a(f's_lshr_b32 s14, s10, 1')
            a(f's_lshl_b32 s14, s14, 9')
            a(f's_add_u32 s11, s11, s14')
            a(f's_add_u32 s11, s11, {WS_MODA}')
            a(f'v_lshl_add_u32 v203, v200, 4, s11')
            a(f's_mov_b32 exec_hi, 0')
            a(f'global_store_dwordx4 v203, v[204:207], {sp(S_WS)} sc1')
        else:
            a(f'v_cvt_pk_bf16_f32 v204, v204, v205')
            a(f'v_mov_b32 v205, s{S_TAG}')
            a(f's_lshl_b32 s11, s10, 8')
            a(f's_add_u32 s11, s11, {WS_MODG + 448*8}')
            a(f'v_add_u32 v203, s11, v201')
            a(f's_mov_b32 exec_hi, 0')
            a(f'global_store_dwordx2 v203, v[204:205], {sp(S_WS)} sc1')
        a(f's_mov_b32 exec_hi, -1')
        a.label(lab)
        a.set_state(st2); a.hist = []
        EST(a, 13 + task)
    a(f's_branch L_spare_end')
    a.label('L_spare_idle')
    a.set_state(st)
    EST(a, 9)
    tag_setup(a)
    a(f's_barrier')
    odd_only(a, 'sp_st2', stats)
    EST(a, 10)
    a.label('L_spare_end')
    a.vmq = []; a.lgq = []; a.hist = []
    if OPT.get('early'):
        a.force_wait(vm=0, lgkm=0)
        EST(a, 15)
        a.force_wait(vm=0, lgkm=0)
        stamps_out(a)
    a(f's_endpgm')

def addr_setup():
    L = []
    L.append(f'v_lshrrev_b32 v236, 5, v1')
    L.append(f'v_bfe_u32 v237, v1, 2, 2')
    L.append(f'v_lshl_add_u32 v236, v236, 2, v237')
    L.append(f'v_lshlrev_b32 v236, 7, v236')
    L.append(f'v_bfe_u32 v238, v1, 4, 1')
    L.append(f'v_lshl_add_u32 v236, v238, 5, v236')
    L.append(f'v_and_b32 v238, 3, v1')
    L.append(f'v_lshl_add_u32 v236, v238, 3, v236')
    L.append(f'v_lshrrev_b32 v237, 1, v237')
    L.append(f'v_lshl_add_u32 v{V_T0}, v237, 6, v236')
    L.append(f'v_xor_b32 v{V_T1}, 64, v{V_T0}')
    L.append(f's_mul_i32 s6, s{S_W}, {SL}')
    L.append(f'v_add_u32 v{V_A0}, s6, v{V_T0}')
    L.append(f'v_add_u32 v{V_A1}, s6, v{V_T1}')
    L.append(f's_lshl_b32 s6, s{S_W}, 13')
    L.append(f's_add_u32 s6, s6, {L_H2}')
    L.append(f'v_add_u32 v{V_X0}, s6, v{V_T0}')
    L.append(f'v_add_u32 v{V_X1}, s6, v{V_T1}')
    L.append(f'v_lshrrev_b32 v236, 3, v1')
    L.append(f'v_bfe_u32 v237, v1, 4, 1')
    L.append(f'v_lshlrev_b32 v237, 2, v237')
    L.append(f'v_and_b32 v238, 7, v1')
    L.append(f'v_xor_b32 v237, v237, v238')
    L.append(f'v_lshlrev_b32 v237, 4, v237')
    L.append(f'v_mul_u32_u24 v238, 3584, v236')
    L.append(f'v_add_u32 v{V_D1}, v237, v238')
    L.append(f'v_mul_u32_u24 v238, 896, v236')
    L.append(f'v_add_u32 v{V_D2}, v237, v238')
    for i in range(1, 4):
        L.append(f'v_add_u32 v{V_D1+i}, {i*(8*3584-1024)}, v{V_D1}')
        L.append(f'v_add_u32 v{V_D2+i}, {i*(8*896-1024)}, v{V_D2}')
    L.append(f's_lshl_b32 s6, s{S_FT}, 9')
    L.append(f's_lshl_b32 s7, s{S_W}, 7')
    L.append(f's_add_u32 s6, s6, s7')
    L.append(f's_add_u32 s{SRD1}, s{S_W1}, s6')
    L.append(f's_addc_u32 s{SRD1+1}, s{S_W1+1}, 0')
    L.append(f's_sub_u32 s{SRD1+2}, {448*3584}, s6')
    L.append(f's_mov_b32 s{SRD1+3}, 0x20000')
    L.append(f's_mul_i32 s6, s{S_W}, {448*896}')
    L.append(f's_lshl_b32 s7, s{S_FT}, 7')
    L.append(f's_add_u32 s6, s6, s7')
    L.append(f's_add_u32 s{SRD2}, s{S_W2}, s6')
    L.append(f's_addc_u32 s{SRD2+1}, s{S_W2+1}, 0')
    L.append(f's_sub_u32 s{SRD2+2}, {1792*896}, s6')
    L.append(f's_mov_b32 s{SRD2+3}, 0x20000')
    return L

def dma_list(srd, vd, rs, ks0, nks, slice_bytes, lds_base, tag):
    L = [f's_mul_i32 s15, s{S_W}, {slice_bytes}', f's_add_u32 s15, s15, {lds_base}']
    n = 2 * nks
    if OPT.get('e3') and tag in ('w2c', 'w2d', 'w2e'): srd = 96 if False else srd; rs = 0; ks0 = 0; vd = V_T0
    for g in range(0, n, 4):
        L.append(f's_add_u32 m0, s15, {g*1024}')
        L.append(f's_mov_b32 s9, {(ks0*16 + g*8)*rs}')
        for i in range(min(4, n - g)):
            L.append((f'buffer_load_dwordx4 v{vd + (0 if vd == V_T0 else i)}, s[{srd}:{srd+3}], s9 offen offset:{1024*i} lds', tag))
    return L

def dmas(a, L, n):
    while L and n > 0:
        x = L.pop(0); emit1(a, x)
        if isinstance(x, tuple): n -= 1

def tr_list(dst, va, ks_list, local0, tag=None):
    L = []
    for ks in ks_list:
        for ct in range(2):
            k, r = dst(ct, ks)
            for sec in range(2):
                L.append((f'ds_read_b64_tr_b16 {k}[{r+2*sec}:{r+2*sec+1}], v{va[ct]} offset:{(ks-local0)*2048 + sec*1024}', tag))
    return L

def tagcheck(a, tagregs, vt):
    first = True
    for r in tagregs:
        if first: a(f'v_xor_b32 v{vt}, s{S_TAG}, v{r}'); first = False
        else: a(f'v_bitop3_b32 v{vt}, v{r}, s{S_TAG}, v{vt} bitop3:0xbe')
    a(f'v_cmp_ne_u32 vcc, 0, v{vt}')

def poll(a, name, loads, tagregs, vt=2, preissued=False):
    if not preissued:
        for l in loads: a(l)
    tagcheck(a, tagregs, vt)
    a(f's_mov_b32 s8, 0')
    a(f's_cbranch_vccz L_{name}_done')
    st = a.state()
    a.label(f'L_{name}')
    if OPT.get('slp', 4): a(f's_sleep {OPT.get("slp", 4)}')
    for l in loads: a(l)
    tagcheck(a, tagregs, vt)
    a(f's_add_u32 s8, s8, 1')
    a(f's_cbranch_vccz L_{name}_done')
    a(f's_cmp_lt_u32 s8, 0x40000')
    a(f's_cbranch_scc1 L_{name}')
    a.label(f'L_{name}_done')
    h = a.hist
    a.set_state(st); a.hist = h

def flag_ops(vaddr, vtag):
    return [f's_mov_b64 exec, 1', f'global_store_dword v{vaddr}, v{vtag}, {sp(S_WS)} sc1', f's_mov_b64 exec, -1']

def w1dst(ct, ks): return ('a', (ct * 28 + ks) * 4)

V_X = 24
V_PAR = 208
V_GA = 40
V_XA = 38
def addr1(a, mid):
    for i in range(4): a(f'v_mov_b32 v{56+i}, 0')
    a(f'v_min_u32 v32, 29, v1')
    a(f's_mul_i32 s6, s{S_PAR}, {UR_CH}')
    a(f's_add_u32 s6, s6, {L_UR + 4096}')
    a(f'v_lshl_add_u32 v32, v32, 4, s6')
    a(f'ds_write_b128 v32, v[56:59]')
    a(f'v_and_b32 v32, 1, v1')
    a(f'v_lshlrev_b32 v32, 4, v32')
    a(f'v_bfe_u32 v33, v1, 1, 1')
    a(f'v_mul_u32_u24 v33, {KC_O}, v33')
    a(f'v_add_u32 v32, v32, v33')
    a(f'v_bfe_u32 v33, v1, 2, 1')
    a(f'v_mul_u32_u24 v33, {KC_CH}, v33')
    a(f'v_add_u32 v32, v32, v33')
    a(f'v_add_u32 v32, {L_KC}, v32')
    a(f'ds_write_b128 v32, v[56:59]')
    a(f'v_and_b32 v32, 1, v1')
    a(f'v_mul_u32_u24 v32, {T_CH}, v32')
    a(f'v_add_u32 v32, {L_T + 64}, v32')
    a(f'ds_write_b64 v32, v[56:57]')
    a(f's_mul_i32 s6, s{S_CH}, {KG_CH}')
    a(f'v_lshl_add_u32 v51, v1, 4, s6')
    for i in range(4): a(f'v_mov_b32 v{56+i}, 0x3f80')
    a(f'ds_write_b128 v51, v[56:59]')
    a(f'v_lshlrev_b32 v32, 3, v0')
    for e in range(9): a(f'v_add_u32 v{V_GA+e}, {e-1}, v32')
    a(f'v_max_i32 v{V_GA}, 0, v{V_GA}')
    for e in range(9): a(f'v_cvt_f32_u32 v{V_GA+e}, v{V_GA+e}')
    for e in range(9): a(f'v_cvt_pk_bf16_f32 v{V_GA+e}, v{V_GA+e}, v{V_GA+e}')
    for e in range(9): a(f'v_and_b32 v{V_GA+e}, 0xffff0000, v{V_GA+e}')
    for e in range(9): a(f'v_cvt_u32_f32 v{V_GA+e}, v{V_GA+e}')
    for e in range(9):
        r = V_GA + e
        if e == OPT.get('mid', -1): mid(a)
        a(f'v_lshrrev_b32 v32, 8, v{r}')
        a(f'v_and_b32 v33, 7, v{r}')
        a(f'v_min_u32 v34, 2, v32')
        a(f'v_lshrrev_b32 v33, v34, v33')
        a(f'v_lshl_add_u32 v34, v32, 1, 8')
        a(f'v_add_u32 v35, 12, v32')
        a(f'v_lshlrev_b32 v32, 3, v32')
        a(f'v_min3_u32 v34, v34, v35, v32')
        a(f'v_add_u32 v33, v33, v34')
        a(f'v_bfe_u32 v34, v{r}, 3, 5')
        a(f'v_mul_u32_u24 v34, {T_ROW}, v34')
        a(f'v_lshl_add_u32 v{r}, v33, 1, v34')
        a(f'v_add_u32 v{r}, {L_T}, v{r}')
    a(f'v_cmp_eq_u32 vcc, 0, v0')
    a(f'v_mov_b32 v32, {L_T + 64}')
    a(f'v_cndmask_b32 v{V_GA}, v{V_GA}, v32, vcc')
    emit(a, addr_setup())
    a(f'v_and_b32 v49, 15, v1')
    a(f'v_lshrrev_b32 v50, 4, v1')
    a(f's_mul_i32 s6, s{S_CH}, {KG_CH}')
    a(f'v_mul_u32_u24 v52, {KG_ROW}, v49')
    a(f'v_lshl_add_u32 v52, v50, 8, v52')
    a(f'v_add_u32 v52, s6, v52')
    a(f's_mul_i32 s7, s{S_PAR}, {16*KG_ROW}')
    a(f'v_add_u32 v53, s7, v52')
    a(f's_mul_i32 s6, s{S_CH}, {T_CH}')
    a(f's_mul_i32 s7, s{S_PAR}, {16*T_ROW}')
    a(f's_add_u32 s6, s6, s7')
    a(f's_add_u32 s6, s6, {L_T}')
    a(f'v_mul_u32_u24 v54, {T_ROW}, v49')
    a(f'v_lshl_add_u32 v54, v50, 3, v54')
    a(f'v_add_u32 v54, s6, v54')
    a(f'v_lshlrev_b32 v55, 4, v0')
    a(f'v_add_u32 v55, {L_KC + 32}, v55')
    a(f'v_add_u32 v56, 2, v49')
    a(f'v_and_b32 v56, 0x1e, v56')
    a(f'v_lshlrev_b32 v56, 1, v56')
    a(f'v_lshl_add_u32 v56, v50, 4, v56')
    a(f'v_and_b32 v57, 1, v49')
    a(f'v_xor_b32 v57, 1, v57')
    a(f'v_mul_u32_u24 v57, {KC_O}, v57')
    a(f'v_add_u32 v56, v56, v57')
    a(f's_mul_i32 s6, s{S_CH}, {KC_CH}')
    a(f's_lshl_b32 s7, s{S_PAR}, 6')
    a(f's_add_u32 s6, s6, s7')
    a(f's_add_u32 s6, s6, {L_KC}')
    a(f'v_add_u32 v56, s6, v56')
    for k in range(1, 4): a(f'v_add_u32 v{56+k}, {1024*k}, v56')
    a(f's_mul_i32 s6, s{S_CH}, {UR_CH}')
    a(f's_add_u32 s6, s6, s7')
    a(f's_add_u32 s6, s6, {L_UR + 480}')
    a(f'v_lshlrev_b32 v60, 5, v49')
    a(f'v_sub_u32 v60, s6, v60')
    a(f'v_lshl_add_u32 v60, v50, 4, v60')
    a(f'v_lshlrev_b32 v61, 4, v0')
    a(f'v_sub_u32 v61, {L_UR + 4080}, v61')
    a(f'v_lshlrev_b32 v62, 4, v0')
    a(f'v_add_u32 v62, {WS_STATS + 4096}, v62')
    for k in range(1, 4): a(f'v_add_u32 v{220+k}, {8192*k}, v62')
    a(f's_mul_i32 s6, s{S_CW}, {2*XTS}')
    a(f's_add_u32 s6, s6, {WS_XT}')
    a(f'v_lshl_add_u32 v30, v0, 5, s6')
    a(f'v_add_u32 v31, {XTS}, v30')
    xt_addr(a)
    a(f'v_and_b32 v63, 1, v1')
    a(f'v_mul_u32_u24 v63, 7168, v63')
    a(f'v_bfe_u32 v32, v1, 1, 1')
    a(f'v_mul_u32_u24 v32, {224*16}, v32')
    a(f's_lshl_b32 s6, s{S_CW}, 4')
    a(f's_add_u32 s6, s6, {WS_MODA}')
    a(f'v_add3_u32 v63, v63, v32, s6')

def kgen(role):
    K = []
    K.append(f's_lshl_b32 s6, s{S_CH}, 4')
    K.append(f's_lshr_b32 s6, s{S_LDTV}, s6')
    K.append(f's_lshl_b32 s6, s6, 16')
    K.append(f'v_mov_b32 v2, s6')
    K.append(f'v_mul_f32 v2, 0x3fb8aa3b, v2')
    K.append(f'v_exp_f32 v2, v2')
    B = [64 + 28 * j for j in range(4)]
    ZR, ZF, W_, E1, E2, E4, E8, E256, E1K, P_, G_, G8, G12, T_, T2 = 0, 1, 2, 4, 6, 8, 4, 10, 12, 6, 14, 16, 18, 20, 22
    def un(j, d, arr):
        src = V_PAR + 2 * arr + (j >> 1)
        K.append(f'v_lshlrev_b32 v{d}, 16, v{src}' if j % 2 == 0 else f'v_and_b32 v{d}, 0xffff0000, v{src}')
    for j in range(4):
        un(j, B[j] + ZR, 0); un(j, B[j] + ZF, 1)
        if j == 0:
            K.append(f'v_cvt_pk_bf16_f32 v2, v2, v2')
            K.append(f'v_and_b32 v2, 0xffff0000, v2')
    for j in range(4):
        b = B[j]
        K.append(f'v_pk_mul_f32 v[{b+ZR}:{b+ZF}], v[{b+ZR}:{b+ZF}], v[2:3] op_sel_hi:[1,0]')
    K.append(f's_mov_b32 s6, 0x3fb8aa3b')
    K.append(f's_mov_b32 s7, 0x3e22f983')
    for j in range(4):
        b = B[j]
        K.append(f'v_pk_mul_f32 v[{b+ZR}:{b+ZF}], v[{b+ZR}:{b+ZF}], s[6:7]')
    def direct(dst, k):
        kf = {1: None, 8: '0x41000000', 256: '0x43800000', 1024: '0x44800000'}[k]
        if kf:
            K.append(f's_mov_b32 s6, {kf}')
            for j in range(4):
                b = B[j]
                K.append(f'v_pk_mul_f32 v[{b+T_}:{b+T_+1}], v[{b+ZR}:{b+ZF}], s[6:7] op_sel_hi:[1,0]')
        for j in range(4):
            b = B[j]
            K.append(f'v_fract_f32 v{b+T_+1}, v{b+(T_+1 if kf else ZF)}')
            K.append(f'v_exp_f32 v{b+T_}, v{b+(T_ if kf else ZR)}')
        for j in range(4):
            b = B[j]
            K.append(f'v_cos_f32 v{b+dst}, v{b+T_+1}')
            K.append(f'v_sin_f32 v{b+dst+1}, v{b+T_+1}')
        for j in range(4):
            b = B[j]
            K.append(f'v_pk_mul_f32 v[{b+dst}:{b+dst+1}], v[{b+dst}:{b+dst+1}], v[{b+T_}:{b+T_+1}] op_sel:[0,0] op_sel_hi:[1,0]')
    def put(row, src):
        o = 176 + 4 * (row % 2)
        for j in range(4):
            b = B[j]
            K.append(f'v_cvt_pk_bf16_f32 v{o+j}, v{b+src}, {"-" if role else ""}v{b+src+1}')
        K.append(f'ds_write_b128 v51, v[{o}:{o+3}] offset:{row*KG_ROW}')
    def mul4(d, x, y):
        c = [cmul(B[j] + d, B[j] + x, B[j] + y, B[j] + T2) for j in range(4)]
        K.extend([c[j][0] for j in range(4)] + [c[j][1] for j in range(4)])
    if role == 0:
        direct(E8, 8)
        put(1, E8)
        mul4(P_, E8, E8); put(2, P_)
        for i in range(3, 32):
            mul4(P_, P_, E8); put(i, P_)
    else:
        direct(E1, 1)
        for j in range(4):
            b = B[j]
            un(j, b + T_, 2); un(j, b + T_ + 1, 3); un(j, b + G8, 4); un(j, b + G8 + 1, 5)
        for j in range(4):
            b = B[j]
            K.append(f'v_pk_mul_f32 v[{b+T_}:{b+T_+1}], v[{b+T_}:{b+T_+1}], v[2:3] op_sel_hi:[1,0]')
        mul4(W_, G8, T_)
        put(32, W_)
        mul4(G_, W_, E1); put(33, G_)
        for jq in range(2, 8):
            mul4(G_, G_, E1); put(32 + jq, G_)
        direct(E256, 256)
        mul4(E2, E1, E1); mul4(E4, E2, E2)
        mul4(G8, W_, E256); put(40, G8)
        mul4(G_, G8, E2); put(41, G_)
        mul4(G_, G_, E2); put(42, G_)
        mul4(G_, G_, E2); put(43, G_)
        mul4(G12, G8, E256); put(44, G12)
        mul4(G_, G12, E4); put(45, G_)
        mul4(G12, G12, E256); put(46, G12)
        mul4(G_, G12, E4); put(47, G_)
        mul4(G8, G12, E256); put(48, G8)
        mul4(G_, G8, E256); put(49, G_)
        mul4(G_, G_, E256); put(50, G_)
        mul4(G_, G_, E256); put(51, G_)
        mul4(G_, G_, E256); put(52, G_)
    return K

def phase1(a):
    a(f's_lshl_b32 s6, s{S_CW}, 1')
    a(f's_add_u32 s6, s6, s{S_CH}')
    a(f's_lshl_b32 s6, s6, 9')
    a(f'v_lshl_add_u32 v32, v1, 3, s6')
    for i, s in enumerate((S_ARE, S_AIM)):
        a(f'global_load_dwordx2 v[{V_PAR+2*i}:{V_PAR+2*i+1}], v32, {sp(s)}')
    a(f's_lshl_b32 s7, s{S_CW}, 2')
    a(f's_load_dword s{S_LDTV}, {sp(S_LDT)}, s7')
    a(f's_load_dword s{S_DSKV}, {sp(S_DSK)}, s7')
    a(f's_load_dword s{S_E}, {sp(S_WS)}, {WS_EPOCH}')
    vm_even = list(a.vmq)
    odd_only(a, 'noodd', lambda a: [a(f'global_load_dwordx2 v[{V_PAR+4+2*i}:{V_PAR+5+2*i}], v32, {sp(s_)}') for i, s_ in enumerate((S_BRE, S_BIM, S_CRE, S_CIM))])
    EST(a, 9)
    def mid(a):
        xt_loads(a)
        vm_even.extend(a.vmq[-2:])
        odd_only(a, 'noodd2', stats_loads)
        EST(a, 11)
    if OPT.get('mid', -1) < 0: mid(a)
    addr1(a, mid)
    a(f's_mul_i32 s6, s{S_CW}, 7168')
    a(f's_mul_i32 s7, s{S_CH}, 3584')
    a(f's_add_u32 s6, s6, s7')
    a(f'v_min_u32 v224, 27, v1')
    a(f'v_lshl_add_u32 v224, v224, 7, s6')
    a(f's_lshl_b32 s6, s{S_LOC}, 2')
    a(f's_add_u32 s6, s6, s{S_W}')
    a(f's_lshl_b32 s6, s6, 13')
    a(f's_add_u32 s6, s6, {192*3584}')
    a(f'v_lshl_add_u32 v225, v1, 7, s6')
    stamp(a, 1)
    a(f's_cmp_eq_u32 s{S_PAR}, 0')
    a(f's_cbranch_scc1 L_pwave')
    st = a.state()
    for role in (1, 0):
        if role == 0:
            a.label('L_pwave'); a.set_state(st); a.vmq = list(vm_even)
        K = kgen(role)
        fill(a, K, OPT.get('xtpos', 100))
        while K[0].startswith('v_pk_mul_f32') and 's[6:7]' in K[0]: emit1(a, K.pop(0))
        tag_setup(a)
        xt_publish(a, 184)
        if role == 1:
            stats(a)
            stamp(a, 2)
        elif PROF: a(f's_memtime s[72:73]')
        if role == 0 and OPT.get('wt', 1) == 1:
            fill(a, K, OPT.get('wtpos', 1000))
            a(f'global_load_dword v226, v224, {sp(S_W1)}')
            a(f'global_load_dword v227, v224, {sp(S_W2)}')
        emit(a, K)
        if role == 1: a(f's_branch L_kdone')
    xl = []
    a.label('L_kdone')
    a.vmq = []; a.hist = []; a.lgq = [(set(), 'ds', None)] * 15
    stamp(a, 3)
    a.barrier()
    FR = 64; RING = 8
    def kread(ks):
        r = FR + 12 * (ks % RING)
        a(f'ds_read_b128 v[{r}:{r+3}], v53 offset:{16*ks}')
        a(f'ds_read_b128 v[{r+4}:{r+7}], v52 offset:{32*KG_ROW + 16*ks}')
        a(f'ds_read_b128 v[{r+8}:{r+11}], v52 offset:{48*KG_ROW + 16*ks}')
    SG, XG = 160, 192
    pl = [f'global_load_dwordx4 v[{SG+4*i}:{SG+4*i+3}], v{62 if i < 2 else 220+i//2}, {sp(S_WS)} offset:{-4096 if i % 2 == 0 else 0} sc1' for i in range(8)]
    pl += [f'global_load_dwordx4 v[{XG+8*ch+4*i}:{XG+8*ch+4*i+3}], v{30+ch}, {sp(S_WS)} offset:{16*i} sc1' for ch in range(2) for i in range(2)]
    pl.append(f'global_load_dwordx4 v[208:211], v63, {sp(S_WS)} sc1')
    pq = list(pl)
    for ks in range(4): kread(ks)
    for k in range(16):
        if k + 4 < 16: kread(k + 4)
        if k >= OPT.get('pk', 11) and pq: a(pq.pop(0))
        q = FR + 12 * (k % RING)
        a(f'v_mfma_f32_16x16x32_bf16 v[12:15], v[{q+4}:{q+7}], v[{q}:{q+3}], ' + ('0' if k == 0 else 'v[12:15]'))
        a(f'v_mfma_f32_16x16x32_bf16 v[16:19], v[{q+8}:{q+11}], v[{q}:{q+3}], ' + ('0' if k == 0 else 'v[16:19]'))
    EST(a, 10)
    a(f'v_cvt_pk_bf16_f32 v12, v12, v13')
    a(f'v_cvt_pk_bf16_f32 v13, v14, v15')
    a(f'v_cvt_pk_bf16_f32 v16, v16, v17')
    a(f'v_cvt_pk_bf16_f32 v17, v18, v19')
    a(f'ds_write_b64 v54, v[12:13]')
    a(f'ds_write_b64 v54, v[16:17] offset:32')
    stamp(a, 4)
    a.barrier()
    for ch in range(2):
        for e in range(9):
            a(f'ds_read_u16 v{64+16*ch+e}, v{V_GA+e} offset:{ch*T_CH}')
    fill(a, pq, 4)
    for ch in range(2):
        g = 64 + 16 * ch; o = 96 + 8 * ch
        fill(a, pq, 2)
        for q in range(4):
            a(f'v_lshl_or_b32 v{o+4+q}, v{g+2*q+1}, 16, v{g+2*q}')
        for q in range(4):
            a(f'v_lshl_or_b32 v{o+q}, v{g+2*q+2}, 16, v{g+2*q+1}')
        a(f'ds_write_b128 v55, v[{o}:{o+3}] offset:{ch*KC_CH}')
        a(f'ds_write_b128 v55, v[{o+4}:{o+7}] offset:{ch*KC_CH + KC_O}')
    emit(a, pq)
    dma = dma_list(SRD1, V_D1, 3584, 0, 12, SL, 0, 'w1r1')
    dmas(a, dma, OPT.get('d1a', 4))
    stamp(a, 5)
    EST(a, 12)
    a.barrier()
    def aread(s_):
        base = 56 + s_ // 8; o = 32 * (s_ % 8)
        return [f'ds_read2_b32 a[{4*s_}:{4*s_+1}], v{base} offset0:{o} offset1:{o+1}',
                f'ds_read2_b32 a[{4*s_+2}:{4*s_+3}], v{base} offset0:{o+2} offset1:{o+3}']
    def bread(mu):
        k = mu + 3
        return [f'ds_read_b128 a[{128+4*k}:{131+4*k}], v60 offset:{128*(28-mu)}']
    for al in range(8): emit(a, aread(4 * al))
    poll(a, 'poll0', pl, [210] + [SG + 4 * i + 2 for i in range(8)] + [XG + 2 * i + 1 for i in range(8)], preissued=True)
    stamp(a, 6)
    if OPT.get('t1', 0) == 2: a(f'global_load_dword v227, v225, {sp(S_W1)}')
    if OPT.get('wt', 1) == 2:
        a(f's_lshl_b32 s6, s{S_PAR}, 1')
        a(f's_add_u32 s6, s6, {S_W1}') if False else None
        a(f'global_load_dword v226, v224, {sp(S_W1)}')
        a(f'global_load_dword v227, v224, {sp(S_W2)}')
    a(f'v_add_f32_dpp v208, v208, v208 quad_perm:[1,0,3,2] row_mask:0xf bank_mask:0xf')
    a(f'v_add_f32_dpp v209, v209, v209 quad_perm:[1,0,3,2] row_mask:0xf bank_mask:0xf')
    a(f'v_cvt_pk_bf16_f32 v208, v208, v209')
    for ch in range(2):
        for k in range(4):
            a(f'v_lshlrev_b32 v{64+8*ch+2*k}, 16, v{XG+8*ch+2*k}')
            a(f'v_and_b32 v{65+8*ch+2*k}, 0xffff0000, v{XG+8*ch+2*k}')
        if ch == 0:
            a(f'v_readlane_b32 s11, v208, 2')
            a(f'v_readlane_b32 s10, v208, 0')
    a(f's_lshl_b32 s13, s11, 16')
    a(f's_and_b32 s14, s11, 0xffff0000')
    a(f'v_add_f32_e64 v100, s13, 1.0')
    a(f'v_add_f32_e64 v101, s14, 1.0')
    a(f's_lshl_b32 s13, s10, 16')
    a(f's_and_b32 s14, s10, 0xffff0000')
    a(f'v_cvt_pk_bf16_f32 v101, v100, v101')
    a(f'v_mov_b32 v102, s13')
    a(f'v_mov_b32 v103, s14')
    for ch in range(2):
        for k in range(4):
            x = 64 + 8 * ch + 2 * k; h = 104 + 8 * ch + 2 * k; g = SG + 8 * k
            a(f'v_pk_fma_f32 v[{h}:{h+1}], v[{x}:{x+1}], v[{g}:{g+1}], v[{g+4}:{g+5}]')
        if ch == 0:
            a(f'v_lshlrev_b32 v100, 16, v101')
            a(f'v_and_b32 v101, 0xffff0000, v101')
    for ch in range(2):
        for k in range(4):
            h = 104 + 8 * ch + 2 * k
            a(f'v_pk_fma_f32 v[{h}:{h+1}], v[{h}:{h+1}], v[100:101], v[102:103] op_sel:[0,{ch},{ch}] op_sel_hi:[1,{ch},{ch}]')
        for q in range(4):
            a(f'v_cvt_pk_bf16_f32 v{120+4*ch+q}, v{104+8*ch+7-2*q}, v{104+8*ch+6-2*q}')
        a(f'ds_write_b128 v61, v[{120+4*ch}:{123+4*ch}] offset:{ch*UR_CH}')
        dmas(a, dma, OPT.get('d1b', 2))
    a.barrier()
    stamp(a, 7)
    for be in range(8): emit(a, bread(4 * be))
    if OPT.get('t1', 0) == 1: a(f'global_load_dword v227, v225, {sp(S_W1)}')
    ACC = 16
    sh = []
    sh.append(f's_lshl_b32 s13, s{S_DSKV}, 16')
    sh.append(f's_and_b32 s14, s{S_DSKV}, 0xffff0000')
    sh.append(f's_mul_i32 s6, s{S_W}, {Y_W}')
    sh.append(f's_add_u32 s6, s6, {L_Y}')
    sh.append(f'v_mul_u32_u24 v4, 80, v49')
    sh.append(f'v_lshl_add_u32 v4, v50, 4, v4')
    sh.append(f'v_add_u32 v4, s6, v4')
    BASE = 128
    for ch in range(2):
        for q in range(4):
            src = 120 + 4 * ch + q
            sh.append(f'v_lshlrev_b32 v14, 16, v{src}')
            sh.append(f'v_and_b32 v15, 0xffff0000, v{src}')
            sh.append(f'v_mul_f32 v{BASE+8*ch+7-2*q}, s{13+ch}, v14')
            sh.append(f'v_mul_f32 v{BASE+8*ch+6-2*q}, s{13+ch}, v15')
    sh.append(f'v_lshrrev_b32 v2, 1, v0')
    sh.append(f'v_mul_u32_u24 v2, 80, v2')
    sh.append(f'v_and_b32 v14, 1, v0')
    sh.append(f'v_lshl_add_u32 v2, v14, 5, v2')
    sh.append(f'v_add_u32 v2, {L_Y}, v2')
    sh.append(f's_mul_i32 s6, s{S_CW}, {2*X2S}')
    sh.append(f's_add_u32 s6, s6, {WS_X2T}')
    sh.append(f'v_lshl_add_u32 v8, v0, 4, s6')
    sh.append(f'v_add_u32 v9, {X2S}, v8')
    sh.append(f'v_min_u32 v144, 223, v0')
    sh.append(f'v_lshlrev_b32 v145, 3, v144')
    sh.append(f'v_add_u32 v145, {WS_MODG + 672*8}, v145')
    sh.append(f'v_and_b32 v146, 31, v1')
    sh.append(f's_lshl_b32 s6, s{S_FT}, 8')
    sh.append(f's_add_u32 s6, s6, {WS_MODG + 1120*8}')
    sh.append(f'v_lshl_add_u32 v147, v146, 3, s6')
    sh.append(f's_mul_i32 s6, s{S_W}, 224')
    sh.append(f's_add_u32 s6, s6, s{S_CW}')
    sh.append(f's_lshl_b32 s6, s6, 6')
    sh.append(f's_add_u32 s6, s6, {WS_FLAG1}')
    sh.append(f'v_mov_b32 v157, s6')
    sh.append(f'v_mov_b32 v239, s{S_TAG}')
    global PM
    PM = [f'global_load_dwordx2 v[148:149], v145, {sp(S_WS)} sc1',
          f'global_load_dwordx2 v[150:151], v145, {sp(S_WS)} offset:{224*8} sc1',
          f'global_load_dwordx2 v[152:153], v147, {sp(S_WS)} sc1',
          f'global_load_dwordx2 v[154:155], v156, {sp(S_WS)} sc1']
    sh.append(f's_lshl_b32 s6, s{S_CW}, 3')
    sh.append(f's_add_u32 s6, s6, {WS_MODG + 448*8}')
    sh.append(f'v_mov_b32 v156, s6')
    sh.extend(PM)
    started = set(); nm = 0; pend_w = []
    for r in range(4):
        rd = []
        if r > 0: a.wait(lgkm=0)
        if r == 3: a.barrier()
        if r < 3:
            for al in range(8): rd += aread(4 * al + r + 1)
            for be in range(8): rd += bread(4 * be - r - 1)
        for be in range(8):
            k = 4 * be - r + 3
            for al in range(8 - be):
                c = al + be; s_ = 4 * al + r
                acc = f'v[{ACC+4*c}:{ACC+4*c+3}]'
                a(f'v_mfma_f32_16x16x32_bf16 {acc}, a[{4*s_}:{4*s_+3}], a[{128+4*k}:{131+4*k}], ' + (acc if c in started else '0'))
                started.add(c); nm += 1
                if pend_w and nm >= pend_w[0][0]:
                    cc = pend_w.pop(0)[1]
                    a(f'ds_write_b128 v4, v[{ACC+4*cc}:{ACC+4*cc+3}] offset:{1280*cc}')
                elif nm % OPT.get('dmak', 8) == 0 and dma:
                    while True:
                        x = dma.pop(0); emit1(a, x)
                        if isinstance(x, tuple): break
                elif rd: emit1(a, rd.pop(0))
                else: fill(a, sh, 2)
                if r == 3 and al == 0: pend_w.append((nm + 6, c))
        assert not rd, (r, len(rd))
    assert nm == 144 and not dma, (len(sh), len(dma))
    emit(a, sh)
    for _, cc in pend_w:
        a(f'ds_write_b128 v4, v[{ACC+4*cc}:{ACC+4*cc+3}] offset:{1280*cc}')
    a.barrier()
    stamp(a, 8)
    for ch in range(2):
        for p in range(2):
            for q in range(2):
                YR = 160
                r = YR + 16 * ch + 8 * p + 4 * q
                a(f'ds_read_b128 v[{r}:{r+3}], v2 offset:{(2*ch+p)*Y_W + 16*q}')
    poll(a, 'pollm', PM, [149, 151, 153, 155], vt=14, preissued=True)
    a(f'v_lshlrev_b32 v10, 16, v154')
    a(f'v_and_b32 v11, 0xffff0000, v154')
    for ch in range(2):
        for q in range(4):
            r = YR + 16 * ch + 2 * q; b = BASE + 8 * ch + 2 * q
            a(f'v_pk_add_f32 v[{r}:{r+1}], v[{r}:{r+1}], v[{b}:{b+1}]')
        for q in range(4):
            r = YR + 16 * ch + 2 * q
            a(f'v_pk_add_f32 v[{r}:{r+1}], v[{r}:{r+1}], v[{r+8}:{r+9}]')
        for q in range(4):
            r = YR + 16 * ch + 2 * q; b = 64 + 8 * ch + 2 * q
            a(f'v_pk_fma_f32 v[{r}:{r+1}], v[{r}:{r+1}], v[10:11], v[{b}:{b+1}] op_sel:[0,{ch},0] op_sel_hi:[1,{ch},1]')
        for q in range(4):
            r = YR + 16 * ch + 2 * q
            a(f'v_cvt_pk_bf16_f32 v{96+4*ch+q}, v{r}, v{r+1}')
        a(f'global_store_dwordx4 v{8+ch}, v[{96+4*ch}:{99+4*ch}], {sp(S_WS)} sc1', tag='x2t')
    stamp(a, 9)

RAW, F32, SS, QQ, PC, XST = 16, 72, 184, 192, 200, 228
BC = 112
def w2dst(u, k): return ('a', (k * 2 + u) * 4)
def phase2(a):
    a.wait_vm_tag('w1r1')
    emit(a, tr_list(w1dst, (V_A0, V_A1), range(0, 12), 0, 'w1tr'))
    a(f'v_lshlrev_b32 v14, 16, v150')
    a(f'v_and_b32 v15, 0xffff0000, v150')
    a(f'v_pk_add_f32 v[14:15], v[14:15], 1.0 op_sel_hi:[1,0]')
    a(f'v_lshlrev_b32 v17, 16, v148')
    a(f'v_and_b32 v19, 0xffff0000, v148')
    a(f'v_cvt_pk_bf16_f32 v150, v14, v15')
    a(f'v_lshlrev_b32 v144, 4, v144')
    a(f'v_add_u32 v144, {L_PC}, v144')
    a(f'v_lshlrev_b32 v16, 16, v150')
    a(f'v_and_b32 v18, 0xffff0000, v150')
    a(f'v_lshlrev_b32 v14, 16, v152')
    a(f'v_and_b32 v15, 0xffff0000, v152')
    a(f'v_lshlrev_b32 v146, 3, v146')
    a(f'v_add_u32 v146, {L_GB}, v146')
    a(f's_mov_b32 s6, 0x3fb8aa3b')
    a(f's_mov_b32 s7, 0x3f317218')
    a(f'v_pk_mul_f32 v[16:17], v[16:17], s[6:7] op_sel_hi:[1,0]')
    a(f'v_pk_mul_f32 v[18:19], v[18:19], s[6:7] op_sel_hi:[1,0]')
    a(f'v_pk_mul_f32 v[14:15], v[14:15], s[6:7] op_sel:[0,1] op_sel_hi:[1,1]')
    a.wait_lg_tag('w1tr')
    d2 = dma_list(SRD1, V_D1, 3584, 12, 12, SL, 0, 'w1r2')
    dmas(a, d2, OPT.get('r2pre', 8))
    a.wait_vm_tag('x2t')
    emit(a, flag_ops(157, 239))
    stamp(a, 10)
    a(f'ds_write_b128 v144, v[16:19]')
    a(f'ds_write_b64 v146, v[14:15]')
    a.barrier()
    emit(a, d2)
    emit(a, dma_list(SRD1, V_D1, 3584, 24, 4, 8192, L_H2, 'w1r2'))
    a(f'v_min_u32 v4, 55, v1')
    a(f's_lshr_b32 s6, s{S_TT}, 3')
    a(f's_lshl_b32 s6, s6, 2')
    a(f's_add_u32 s6, s6, s{S_W}')
    a(f's_mul_i32 s6, s6, {56*64}')
    a(f's_add_u32 s6, s6, {WS_FLAG1}')
    a(f'v_lshl_add_u32 v12, v4, 6, s6')
    a(f'v_lshrrev_b32 v4, 3, v0')
    a(f'v_and_b32 v5, 7, v0')
    a(f'v_mul_u32_u24 v6, {X2S}, v4')
    a(f'v_lshl_add_u32 v6, v5, 4, v6')
    a(f's_lshl_b32 s6, s{S_TT}, 7')
    a(f's_add_u32 s6, s6, {WS_X2T}')
    a(f'v_add_u32 v6, s6, v6')
    a(f's_mul_i32 s7, s{S_FT}, {64*X2S}')
    a(f'v_add_u32 v7, s7, v6')
    a(f'v_bfe_u32 v8, v4, 1, 1')
    a(f'v_lshlrev_b32 v8, 2, v8')
    a(f'v_xor_b32 v8, v8, v5')
    a(f'v_lshlrev_b32 v8, 4, v8')
    a(f'v_lshl_add_u32 v8, v4, 7, v8')
    a(f'v_add_u32 v8, {L_H2}, v8')
    a(f'v_lshlrev_b32 v9, 3, v4')
    a(f'v_add_u32 v9, {L_PC}, v9')
    a(f'v_lshrrev_b32 v10, 5, v1')
    a(f'v_lshlrev_b32 v10, 8, v10')
    a(f'v_bfe_u32 v11, v1, 4, 1')
    a(f'v_lshl_add_u32 v10, v11, 4, v10')
    a(f'v_lshl_add_u32 v10, v5, 5, v10')
    a(f's_lshl_b32 s6, s{S_W}, 9')
    a(f's_add_u32 s6, s6, {L_PS}')
    a(f'v_add_u32 v10, s6, v10')
    a(f'v_lshlrev_b32 v11, 5, v5')
    a(f'v_add_u32 v11, {L_PS}, v11')
    for i in range(14):
        a(f'ds_read_b64 v[{PC+2*i}:{PC+2*i+1}], v9 offset:{256*i}')
    poll(a, 'poll1', [f'global_load_dword v16, v12, {sp(S_WS)} sc1'], [16])
    a(f's_barrier')
    stamp(a, 11)
    for i in range(14):
        a(f'global_load_dwordx4 v[{RAW+4*i}:{RAW+4*i+3}], v6, {sp(S_WS)} sc1')
        if i < 13: a(f'v_add_u32 v6, {32*X2S}, v6')
    a(f'global_load_dwordx4 v[{XST}:{XST+3}], v7, {sp(S_WS)} sc1')
    a(f'v_add_u32 v7, {32*X2S}, v7')
    a(f'global_load_dwordx4 v[{XST+4}:{XST+7}], v7, {sp(S_WS)} sc1')
    a.wait_vm_tag('w1r2')
    emit(a, tr_list(w1dst, (V_A0, V_A1), range(12, 24), 12, 'w1tr'))
    emit(a, tr_list(w1dst, (V_X0, V_X1), range(24, 28), 24))
    a(f's_lshl_b32 s7, s{S_CH}, 6')
    a(f'v_xor_b32 v{V_A0}, s7, v{V_A0}')
    a(f'v_xor_b32 v{V_A1}, s7, v{V_A1}')
    a(f's_mul_i32 s6, s{S_W}, {W2H}')
    a(f's_add_u32 s6, s6, {L_H2}')
    a(f'v_xor_b32 v2, s7, v{V_T0}')
    a(f'v_xor_b32 v3, s7, v{V_T1}')
    a(f'v_add_u32 v{V_X0}, s6, v2')
    a(f'v_add_u32 v{V_X1}, s6, v3')
    a(f'v_add_u32 v12, {L_H2}, v{V_T0}')
    a(f'v_add_u32 v13, {L_H2}, v{V_T1}')
    d1 = dma_list(SRD2, V_D2, 896, 0, 12, SL, 0, 'w2a')
    a.wait_lg_tag('w1tr')
    for i in range(14):
        for k in range(4):
            x = F32 + 8 * i + 2 * k
            a(f'v_lshlrev_b32 v{x}, 16, v{RAW+4*i+k}')
            a(f'v_and_b32 v{x+1}, 0xffff0000, v{RAW+4*i+k}')
        for k in range(4):
            x = F32 + 8 * i + 2 * k
            if i == 0:
                a(f'v_pk_mul_f32 v[{QQ+2*k}:{QQ+2*k+1}], v[{x}:{x+1}], v[{x}:{x+1}]')
            elif i == 1:
                a(f'v_pk_add_f32 v[{SS+2*k}:{SS+2*k+1}], v[{x}:{x+1}], v[{x-8}:{x-7}]')
                a(f'v_pk_fma_f32 v[{QQ+2*k}:{QQ+2*k+1}], v[{x}:{x+1}], v[{x}:{x+1}], v[{QQ+2*k}:{QQ+2*k+1}]')
            else:
                a(f'v_pk_add_f32 v[{SS+2*k}:{SS+2*k+1}], v[{x}:{x+1}], v[{SS+2*k}:{SS+2*k+1}]')
                a(f'v_pk_fma_f32 v[{QQ+2*k}:{QQ+2*k+1}], v[{x}:{x+1}], v[{x}:{x+1}], v[{QQ+2*k}:{QQ+2*k+1}]')
        if i >= 10: dmas(a, d1, 1)
    stamp(a, 12)
    for i in range(8): a(f'v_permlane32_swap_b32 v{SS+i}, v{QQ+i}')
    for k in range(4): a(f'v_pk_add_f32 v[{SS+2*k}:{SS+2*k+1}], v[{SS+2*k}:{SS+2*k+1}], v[{QQ+2*k}:{QQ+2*k+1}]')
    for i in range(4): a(f'v_permlane16_swap_b32 v{SS+i}, v{SS+4+i}')
    for k in range(2): a(f'v_pk_add_f32 v[{SS+2*k}:{SS+2*k+1}], v[{SS+2*k}:{SS+2*k+1}], v[{SS+4+2*k}:{SS+5+2*k}]')
    dmas(a, d1, 1)
    for i in range(4): a(f'v_add_f32_dpp v{SS+i}, v{SS+i}, v{SS+i} row_ror:8 row_mask:0xf bank_mask:0xf')
    a(f'ds_write_b128 v10, v[{SS}:{SS+3}]')
    dmas(a, d1, 2)
    a.barrier()
    T = RAW
    def P(w, j):
        r = T + 16 * w + j
        return r if r < F32 else SS + (r - F32)
    for w in range(4):
        for st_ in range(2):
            for q in range(2):
                r = P(w, 8 * st_ + 4 * q)
                a(f'ds_read_b128 v[{r}:{r+3}], v11 offset:{w*512 + st_*256 + q*16}')
    a(f's_cmp_lg_u32 s2, 0')
    a(f's_cbranch_scc1 L_nobump')
    st = a.state()
    a(f'v_mov_b32 v2, s{S_E}')
    a(f'v_mov_b32 v3, {WS_EPOCH}')
    a(f'global_store_dword v3, v2, {sp(S_WS)} sc1')
    a.label('L_nobump')
    a.set_state(st)
    for k in range(8):
        a(f'v_pk_add_f32 v[{T+2*k}:{T+2*k+1}], v[{T+2*k}:{T+2*k+1}], v[{P(1,2*k)}:{P(1,2*k)+1}]')
    for k in range(8):
        a(f'v_pk_add_f32 v[{T+32+2*k}:{T+33+2*k}], v[{T+32+2*k}:{T+33+2*k}], v[{P(3,2*k)}:{P(3,2*k)+1}]')
    for k in range(8):
        a(f'v_pk_add_f32 v[{T+2*k}:{T+2*k+1}], v[{T+2*k}:{T+2*k+1}], v[{T+32+2*k}:{T+33+2*k}]')
    a(f's_mov_b32 s6, 0x3b124925')
    a(f's_mov_b32 s7, 0x3727c5ac')
    for k in range(8):
        a(f'v_pk_mul_f32 v[{T+2*k}:{T+2*k+1}], v[{T+2*k}:{T+2*k+1}], s[6:7] op_sel_hi:[1,0]')
    for k in range(4):
        a(f'v_pk_fma_f32 v[{T+8+2*k}:{T+9+2*k}], v[{T+2*k}:{T+2*k+1}], v[{T+2*k}:{T+2*k+1}], v[{T+8+2*k}:{T+9+2*k}] neg_lo:[1,0,0] neg_hi:[1,0,0]')
    for k in range(4):
        a(f'v_pk_add_f32 v[{T+8+2*k}:{T+9+2*k}], v[{T+8+2*k}:{T+9+2*k}], s[6:7] op_sel:[0,1] op_sel_hi:[1,1]')
    for k in range(8): a(f'v_max_f32 v{T+8+k}, s7, v{T+8+k}')
    for k in range(8): a(f'v_rsq_f32 v{T+8+k}, v{T+8+k}')
    dmas(a, d1, 1)
    for k in range(4):
        a(f'v_pk_mul_f32 v[{T+2*k}:{T+2*k+1}], v[{T+2*k}:{T+2*k+1}], v[{T+8+2*k}:{T+9+2*k}] neg_lo:[1,0] neg_hi:[1,0]')
    stamp(a, 13)
    for i in range(14):
        o = 32 + 4 * (i % 4)
        for k in range(4):
            x = F32 + 8 * i + 2 * k
            a(f'v_pk_fma_f32 v[{x}:{x+1}], v[{x}:{x+1}], v[{T+8+2*k}:{T+9+2*k}], v[{T+2*k}:{T+2*k+1}]')
        for k in range(4):
            x = F32 + 8 * i + 2 * k
            a(f'v_pk_fma_f32 v[{x}:{x+1}], v[{x}:{x+1}], v[{PC+2*i}:{PC+2*i+1}], v[{PC+2*i}:{PC+2*i+1}] op_sel:[0,0,1] op_sel_hi:[1,0,1]')
        for k in range(4):
            x = F32 + 8 * i + 2 * k
            a(f'v_cvt_pk_bf16_f32 v{o+k}, v{x}, v{x+1}')
        a(f'ds_write_b128 v8, v[{o}:{o+3}] offset:{4096*i}')
        if i % 2 == 1: dmas(a, d1, 1)
    a.barrier()
    stamp(a, 14)
    TMP = 48
    def silu_ops(acc, ct, jt, o):
        L = []
        for e in range(-2, 18):
            if 0 <= e + 2 < 16: L.append(f'v_exp_f32 v{TMP+(e+2)%8}, -v{acc+e+2}')
            if 0 <= e - 1 < 16:
                L.append(f'v_mul_f32 v{TMP+(e-1)%8}, v{TMP+(e-1)%8}, v{acc+e-1}')
            if 0 <= e + 1 < 16: L.append(f'v_add_f32 v{TMP+(e+1)%8}, 1.0, v{TMP+(e+1)%8}')
            if 0 <= e < 16: L.append(f'v_rcp_f32 v{TMP+e%8}, v{TMP+e%8}')
            if 0 <= e - 2 < 16 and (e - 2) % 2 == 1:
                p = (e - 2) // 2
                L.append(f'v_cvt_pk_bf16_f32 v{o+p}, v{TMP+(e-3)%8}, v{TMP+(e-2)%8}')
                if p % 4 == 3:
                    q = p // 4
                    L.append((f'global_store_dwordx4 v{10+jt}, v[{o+4*q}:{o+4*q+3}], {sp(S_WS)} offset:{ct*2048 + q*1024} {"" if OPT.get("e2") else "sc1"}', f'hst{jt}'))
        return L
    def bread1(jt, ks):
        r = BC + 4 * ks
        return [(f'ds_read_b64_tr_b16 v[{r+2*sec}:{r+2*sec+1}], v{12+jt} offset:{ks*2048 + sec*1024}', 'b1') for sec in range(2)]
    tiles = [(0, 0), (1, 0), (0, 1), (1, 1)]
    PRE = 6
    for ks in range(PRE): emit(a, bread1(0, ks))
    ad = []
    ad.append(f's_mul_i32 s10, s{S_TT}, {224*1024}')
    ad.append(f's_lshl_b32 s7, s{S_FT}, 14')
    ad.append(f's_add_u32 s6, s10, s7')
    ad.append(f's_lshl_b32 s7, s{S_W}, 12')
    ad.append(f's_add_u32 s6, s6, s7')
    ad.append(f's_add_u32 s6, s6, {WS_H}')
    ad.append(f'v_lshl_add_u32 v10, v1, 4, s6')
    ad.append(f'v_add_u32 v11, {112*1024}, v10')
    ad.append(f's_lshl_b32 s6, s{S_CW}, 2')
    ad.append(f's_add_u32 s6, s6, s{S_W}')
    ad.append(f's_lshl_b32 s6, s6, 6')
    ad.append(f's_add_u32 s6, s6, {WS_FLAG2}')
    ad.append(f'v_mov_b32 v80, s6')
    ad.append(f'v_add_u32 v81, {F2S}, v80')
    ad.append(f's_mul_i32 s6, s{S_TT}, 28')
    ad.append(f's_mul_i32 s7, s{S_W}, 7')
    ad.append(f's_add_u32 s6, s6, s7')
    ad.append(f's_lshl_b32 s6, s6, 6')
    ad.append(f's_add_u32 s6, s6, {WS_FLAG2}')
    ad.append([f's_add_u32 s32, s{S_WS}, s6', f's_addc_u32 s33, s{S_WS+1}, 0'])
    ad.append([f's_add_u32 s34, s32, {F2S}', f's_addc_u32 s35, s33, 0'])
    ad.append(f's_mul_i32 s7, s{S_W}, {28*1024}')
    ad.append(f's_add_u32 s6, s10, s7')
    ad.append(f's_add_u32 s6, s6, {WS_H + 4096}')
    ad.append(f'v_lshl_add_u32 v84, v1, 4, s6')
    for k in range(1, 4): ad.append(f'v_add_u32 v{84+k}, {8192*k}, v84')
    dC = dma_list(SRD2, V_D2, 896, 12, 6, W2H, L_H2, 'w2c')
    if OPT.get('t2', 1):
        ad.append(f's_mul_i32 s6, s{S_W}, {448*896}')
        ad.append(f's_mul_i32 s7, s{S_LOC}, 5120')
        ad.append(f's_add_u32 s6, s6, s7')
        ad.append(f's_add_u32 s6, s6, {288*896}')
        ad.append(f'v_min_u32 v90, 39, v1')
        ad.append(f'v_lshl_add_u32 v90, v90, 7, s6')
        ad.append(f'global_load_dword v91, v90, {sp(S_W2)}')
    nb1 = 0
    silu = []
    for ti, (ct, jt) in enumerate(tiles):
        acc = 16 + 16 * (ti & 1)
        if ti > 0:
            pc, pj = tiles[ti - 1]
            silu = silu_ops(16 + 16 * ((ti - 1) & 1), pc, pj, 64 + 8 * ((ti - 1) & 1))
        for ks in range(28):
            A = (ct * 28 + ks) * 4; r = BC + 4 * ks
            if ti == 0 and ks % 2 == 0 and ks + 1 < 28:
                want = {f'v{BC+4*(ks+1)+3}'}
                idx = [i for i, (w, k, t) in enumerate(a.lgq) if w & want]
                if idx: a.wait(lgkm=len(a.lgq) - 1 - idx[-1])
            if ti == 3 and ks == 0:
                a.barrier()
            a(f'v_mfma_f32_32x32x16_bf16 v[{acc}:{acc+15}], a[{A}:{A+3}], v[{r}:{r+3}], ' + ('0' if ks == 0 else f'v[{acc}:{acc+15}]'))
            budget = 6
            if ti == 0:
                if ks + PRE < 28:
                    emit(a, bread1(0, ks + PRE))
                    if d1 and ks % 2 == 0: dmas(a, d1, 1)
                    else: fill(a, ad, 2)
                else: fill(a, ad, 6)
                continue
            if ti in (1, 2) and nb1 < 28:
                lim = ks if ti == 1 else 27
                rate = 1 if (ks < 3 or ti == 2 or ks % 2 == 0) else 0
                if rate and nb1 <= lim:
                    emit(a, bread1(1, nb1)); nb1 += 1; budget -= 4
            if dC and ti == 3 and (ks % 2 == 1 or ks < 3):
                n0 = a.count; dmas(a, dC, 1); budget -= a.count - n0
            if silu and ks >= 3: fill(a, silu, 1000 if ks == 27 else budget)
        assert not silu
    assert nb1 == 28 and not d1 and not dC and not ad
    a.wait_vm_tag('hst0')
    emit(a, flag_ops(80, 239))
    emit(a, silu_ops(32, 1, 1, 72))
    stamp(a, 15)

def spoll_issue(base):
    return [f's_load_dword s{18+k}, s[{base}:{base+1}], {64*k} glc' for k in range(7)]
def spoll_check(a, name, base):
    def chk():
        a(f's_xor_b32 s18, s18, s{S_TAG}')
        for k in range(1, 7):
            a(f's_xor_b32 s{18+k}, s{18+k}, s{S_TAG}')
            a(f's_or_b32 s18, s18, s{18+k}')
        a(f's_cbranch_scc0 L_{name}_done')
    a(f's_mov_b32 s8, 0')
    chk()
    st = a.state()
    a.label(f'L_{name}')
    a(f's_sleep {OPT.get("slp", 4)}')
    emit(a, spoll_issue(base))
    chk()
    a(f's_add_u32 s8, s8, 1')
    a(f's_cmp_lt_u32 s8, 0x40000')
    a(f's_cbranch_scc1 L_{name}')
    a.label(f'L_{name}_done')
    h = a.hist; a.set_state(st); a.hist = h

def phase3(a):
    def hload(jt, ks):
        return f'global_load_dwordx4 v[{BC+4*ks}:{BC+4*ks+3}], v{84+4*jt+ks//8}, {sp(S_WS)} offset:{(ks%8)*1024-4096} sc1'
    a.wait_vm_tag('w2a')
    emit(a, tr_list(w2dst, (V_A0, V_A1), range(0, 6), 0))
    a(f'ds_write_b128 v8, v[{XST}:{XST+3}] offset:{L_XS - L_H2}')
    a(f'ds_write_b128 v8, v[{XST+4}:{XST+7}] offset:{L_XS - L_H2 + 4096}')
    emit(a, spoll_issue(32))
    emit(a, tr_list(w2dst, (V_A0, V_A1), range(6, 10), 0))
    QST(a, 6)
    spoll_check(a, 'poll2', 32)
    PST(a, 4)
    PD = OPT.get('pd', 12)
    for ks in range(PD): a(hload(0, ks))
    QST(a, 7)
    t3 = tr_list(w2dst, (V_A0, V_A1), range(10, 12), 0) + [('W', 'w2c')] + tr_list(w2dst, (V_X0, V_X1), range(12, 18), 12)
    fill(a, t3, OPT.get('t3pre', 32))
    a.wait_vm_tag('hst1')
    QST(a, 8)
    emit(a, flag_ops(81, 239))
    dD = dma_list(SRD2, V_D2, 896, 18, 10, SL, 0, 'w2d')
    t4 = [('W', 'w2d')] + tr_list(w2dst, (V_A0, V_A1), range(18, 28), 18)
    PST(a, 0)
    sh = []
    for k in range(4): sh.append(f'v_add_u32 v{88+k}, {112*1024}, v{84+k}')
    for u in range(2):
        for v in range(2):
            sh.append(f's_xor_b32 s6, s{S_CH}, {u}')
            sh.append(f's_lshl_b32 s6, s6, 3')
            sh.append(f's_add_u32 s6, s6, s{S_W}')
            sh.append(f's_lshl_b32 s6, s6, 12')
            sh.append(f's_add_u32 s6, s6, {L_RED + v*16384}')
            sh.append(f'v_lshl_add_u32 v{4+2*u+v}, v1, 4, s6')
    sh.append(f's_lshl_b32 s6, s{S_W}, 14')
    sh.append(f'v_lshl_add_u32 v9, v1, 4, s6')
    sh.append(f's_lshl_b32 s7, s{S_CH}, 7')
    sh.append(f's_add_u32 s7, s7, {L_GB}')
    sh.append(f'v_lshrrev_b32 v14, 5, v1')
    sh.append(f'v_lshl_add_u32 v15, v14, 4, s7')
    sh.append(f's_lshl_b32 s7, s{S_PAR}, 6')
    sh.append(f'v_xor_b32 v94, s7, v{V_T0}')
    sh.append(f's_lshl_b32 s7, s{S_CH}, 12')
    sh.append(f's_add_u32 s7, s7, {L_XS}')
    sh.append(f'v_add_u32 v94, s7, v94')
    sh.append(f's_lshl_b32 s10, s{S_TT}, 6')
    sh.append(f's_lshl_b32 s7, s{S_PAR}, 5')
    sh.append(f's_add_u32 s10, s10, s7')
    sh.append(f's_mul_i32 s10, s10, 896')
    sh.append(f's_lshl_b32 s7, s{S_FT}, 7')
    sh.append(f's_add_u32 s10, s10, s7')
    sh.append(f's_lshl_b32 s7, s{S_CH}, 6')
    sh.append(f's_add_u32 s10, s10, s7')
    sh.append(f'v_and_b32 v95, 31, v1')
    sh.append(f'v_mul_u32_u24 v95, 896, v95')
    sh.append(f'v_lshl_add_u32 v95, v14, 4, v95')
    sh.append(f'v_add_u32 v95, s10, v95')
    def mf(u, v, ks):
        acc = 16 + 16 * (2 * u + v); k, A = w2dst(u, ks)
        a(f'v_mfma_f32_32x32x16_bf16 v[{acc}:{acc+15}], a[{A}:{A+3}], v[{BC+4*ks}:{BC+4*ks+3}], ' + ('0' if ks == 0 else f'v[{acc}:{acc+15}]'))
    for ks in range(28):
        if ks == 28 - PD - OPT.get('p1d', 4): emit(a, spoll_issue(34))
        if ks == 28 - PD:
            PST(a, 1)
            spoll_check(a, 'poll3', 34)
        for u in range(2):
            mf(u, 0, ks)
            if u == 1: a(hload(0, ks + PD) if ks + PD < 28 else hload(1, ks + PD - 28))
            n0 = a.count
            if dD: dmas(a, dD, 1)
            b = 5 - (a.count - n0)
            if t3: fill(a, t3, b)
            elif ks >= 14 and t4: fill(a, t4, 6)
            elif sh: fill(a, sh, b)
    assert not t4 and not sh and not t3 and not dD
    a.barrier()
    late = []
    for u in range(2):
        for q in range(4): late.append(f'ds_write_b128 v{4+2*u}, v[{16+32*u+4*q}:{19+32*u+4*q}] offset:{1024*q}')
    for g in range(4):
        late.append(f'ds_read_b128 v[{96+4*g}:{99+4*g}], v15 offset:{32*g}')
        late.append(f'ds_read_b64_tr_b16 v[{224+2*g}:{225+2*g}], v94 offset:{1024*g}')
    for g in range(4):
        for q in range(2):
            late.append(f'v_lshlrev_b32 v{16+4*g+2*q}, 16, v{224+2*g+q}')
            late.append(f'v_and_b32 v{17+4*g+2*q}, 0xffff0000, v{224+2*g+q}')
    for ks in range(28):
        for u in range(2):
            mf(u, 1, ks)
            if u == 1 and ks + PD < 28: a(hload(1, ks + PD))
            if ks >= 2: fill(a, late, 4)
    assert not late
    PST(a, 2)
    for u in (1, 0):
        for q in range(4): a(f'ds_write_b128 v{5+2*u}, v[{32+32*u+4*q}:{35+32*u+4*q}] offset:{1024*q}')
    a.barrier()
    R = 112
    for k in range(4):
        for q in range(4):
            a(f'ds_read_b128 v[{R+16*k+4*q}:{R+16*k+4*q+3}], v9 offset:{4096*k + 1024*q}')
    for p in range(8): a(f'v_pk_add_f32 v[{R+2*p}:{R+2*p+1}], v[{R+2*p}:{R+2*p+1}], v[{R+16+2*p}:{R+17+2*p}]')
    for p in range(8): a(f'v_pk_add_f32 v[{R+32+2*p}:{R+33+2*p}], v[{R+32+2*p}:{R+33+2*p}], v[{R+48+2*p}:{R+49+2*p}]')
    for p in range(8): a(f'v_pk_add_f32 v[{R+2*p}:{R+2*p+1}], v[{R+2*p}:{R+2*p+1}], v[{R+32+2*p}:{R+33+2*p}]')
    for p in range(8):
        a(f'v_pk_fma_f32 v[{R+2*p}:{R+2*p+1}], v[{R+2*p}:{R+2*p+1}], v[{96+2*p}:{97+2*p}], v[{16+2*p}:{17+2*p}]')
    for p in range(8):
        a(f'v_cvt_pk_bf16_f32 v{176+p}, v{R+2*p}, v{R+2*p+1}')
    for q in range(2):
        a(f'v_permlane32_swap_b32 v{176+4*q}, v{178+4*q}')
        a(f'v_permlane32_swap_b32 v{177+4*q}, v{179+4*q}')
    for q in range(2):
        a(f'global_store_dwordx4 v95, v[{176+4*q}:{179+4*q}], {sp(S_OUT)} offset:{32*q}')
    PST(a, 3)

def PST(a, k):
    if PROF and OPT.get('late'):
        a(f's_memtime s[{68+2*(k+1)}:{69+2*(k+1)}]')

def QST(a, k):
    if PROF and OPT.get('late') == 2:
        a(f's_memtime s[{68+2*k}:{69+2*k}]')

def build(prof=False):
    global PROF
    PROF = prof
    a = Asm()
    setup(a)
    stamp(a, 0)
    if OPT.get('dbgout'):
        a(f's_memrealtime s[98:99]')
        a(f's_mov_b32 s101, s98')
    a(f's_cmp_ge_u32 s{S_LOC}, 28')
    a(f's_cbranch_scc1 L_spare')
    st = a.state()
    phase1(a)
    phase2(a)
    phase3(a)
    stamps_out(a)
    a.label('L_end')
    a('s_endpgm')
    a.set_state(st)
    spare(a)
    a.label('L_codeend')
    hdr = f"""; @launch grid=(256,1,1) block=(256,1,1) lds={LDS_TOTAL}
.amdgcn_target "amdgcn-amd-amdhsa--gfx950"
.text
.globl {KN}_kernel
.p2align 8
.type {KN}_kernel,@function
{KN}_kernel:
"""
    ftr = f""".section .rodata,"a"
.p2align 6
.amdhsa_kernel {KN}_kernel
  .amdhsa_next_free_vgpr 512
  .amdhsa_next_free_sgpr 102
  .amdhsa_accum_offset 256
  .amdhsa_group_segment_fixed_size 0
  .amdhsa_kernarg_size 136
  .amdhsa_user_sgpr_count 2
  .amdhsa_user_sgpr_kernarg_segment_ptr 1
  .amdhsa_system_sgpr_workgroup_id_x 1
.end_amdhsa_kernel
"""
    sys.stderr.write(f'instructions {a.count} nop states {a.nops}\n')
    return hdr + a.text() + ftr

if __name__ == '__main__':
    ap = argparse.ArgumentParser()
    ap.add_argument('out'); ap.add_argument('--prof', action='store_true'); ap.add_argument('-o', action='append', default=[])
    args = ap.parse_args()
    for kv in args.o:
        k, v = kv.split('='); OPT[k] = int(v)
    t = build(args.prof)
    if OPT.get('align', 1):
        import align
        t, w_, n_ = align.align(t)
        sys.stderr.write(f'aligned: widened {w_} nops {n_}\n')
    open(args.out, 'w').write(t)
```

```python
import sys, argparse
from asmlib import Asm
KN = 'adaLN_cond__ssm_conv_s4__dense_activation_silu__prompt'

WS_EPOCH = 0
WS_STATS = 0x210000
WS_XT    = 0xA00000
WS_MODG  = 0x5000
WS_MODA  = 0x1000
WS_FLAG1 = 0x10000
WS_FLAG2 = 0x1E000
F2S = 0xE000
WS_PROF  = 0x220000
WS_X2T   = 0x40000
X2S = 4224; XTS = 8320
WS_H     = 0x280000

KG_ROW = 1040; KG_CH = 53 * KG_ROW
L_B    = 2 * KG_CH
L_T    = L_B; T_ROW = 72; T_CH = 32 * T_ROW
L_KC   = L_T + 2 * T_CH
KC_O = 4160; KC_CH = 8320
L_Y    = L_B; Y_W = 10240
L_UR   = L_B + 4 * Y_W; UR_CH = 4608
LDS_TOTAL = 163840
L_XT = 131584
SL = 24576
L_PC = 4 * SL
L_PS = L_PC + 3584
L_GB = L_PS + 2048
L_H2 = 106496
W2H = 12288
L_XS = L_H2 + 4 * W2H
L_RED = 0

S_AU, S_ARE, S_AIM, S_BRE, S_BIM, S_CRE, S_CIM, S_LDT = [16 + 2 * i for i in range(8)]
S_DSK, S_BX, S_W1, S_W2, S_C, S_WM, S_OUT, S_DBG = [32 + 2 * i for i in range(8)]
S_WS = 48
S_TAG, S_E, S_XCD, S_LOC, S_CW, S_TT, S_FT, S_W = 50, 51, 52, 53, 54, 55, 56, 57
S_LDTV, S_DSKV = 58, 59
SRD1, SRD2 = 60, 64
S_R0, S_CH, S_PAR = 4, 5, 3
def sp(i): return f's[{i}:{i+1}]'
V_T0, V_T1 = 240, 241
V_A0, V_A1 = 242, 243
V_X0, V_X1 = 244, 245
V_D1 = 246
V_D2 = 250

PROF = False
OPT = {}
STAMPS = []
def stamp(a, idx):
    if not PROF: return
    if OPT.get('early') and idx >= 8: return
    assert idx < 16 and idx not in STAMPS
    a(f's_memtime s[{68+2*idx}:{69+2*idx}]')
    STAMPS.append(idx)
def stamps_out(a):
    if not PROF: return
    if OPT.get('dbgout'):
        a(f's_memrealtime s[14:15]')
        a(f's_cmp_lg_u32 s2, {OPT["dbgout"]-1}')
        a(f's_cbranch_scc1 L_end')
        a(f's_cmp_lg_u32 s{S_W}, 0')
        a(f's_cbranch_scc1 L_end')
        a(f'v_mov_b32 v254, 0')
        a(f's_sub_u32 s14, s14, s12') if False else None
        for idx in sorted(STAMPS):
            if idx == 0: a(f's_sub_u32 s6, s14, s101')
            else: a(f's_sub_u32 s6, s{68+2*idx}, s68')
            a(f'v_mov_b32 v255, s6')
            a(f'global_store_dword v254, v255, {sp(S_DBG)} offset:{idx*4}')
        return
    a(f'v_mov_b32 v254, s100')
    for idx in STAMPS:
        a(f'v_mov_b32 v255, s{68+2*idx}')
        a(f'global_store_dword v254, v255, {sp(S_WS)} offset:{idx*4}')

def EST(a, k):
    if PROF and OPT.get('early'):
        a(f's_memtime s[{68+2*k}:{69+2*k}]')
        if k not in STAMPS: STAMPS.append(k)

def emit1(a, x):
    if isinstance(x, list):
        for y in x: a(y)
        return len(x)
    if isinstance(x, tuple):
        if x[0] == 'W': a.wait_vm_tag(x[1]); return 0
        if x[0] == 'L': a.wait_lg_tag(x[1]); return 0
        a(x[0], tag=x[1]); t = x[0]
    else:
        a(x); t = x
    if t.startswith(('v_exp', 'v_rcp', 'v_rsq', 'v_sin', 'v_cos', 'v_sqrt')): return 2
    if t.startswith('ds_write_b128'): return 7
    if t.startswith('ds_write_b64'): return 5
    if t.startswith('ds_read'): return 2
    return 1
def emit(a, L):
    for x in L: emit1(a, x)
def fill(a, L, budget):
    c = 0
    while L and c < budget: c += emit1(a, L.pop(0))

def cmul(d, x, y, t):
    return [f'v_pk_mul_f32 v[{t}:{t+1}], v[{x}:{x+1}], v[{y}:{y+1}] op_sel:[0,0] op_sel_hi:[1,0]',
            f'v_pk_fma_f32 v[{d}:{d+1}], v[{x}:{x+1}], v[{y}:{y+1}], v[{t}:{t+1}] op_sel:[1,1,0] op_sel_hi:[0,1,1] neg_lo:[1,0,0]']

def setup(a):
    a(f's_cmp_ge_u32 s2, 256')
    a(f's_cbranch_scc1 L_end')
    EST(a, 8)
    a(f's_load_dwordx16 s[16:31], s[0:1], 0')
    if OPT.get('cpf', 32):
        a(f's_cmp_ge_u32 s2, {OPT.get("cpf", 32)}')
        a(f's_cbranch_scc1 L_nocpf')
        a(f's_getpc_b64 s[14:15]')
        a.label('L_pc')
        a(f'v_lshlrev_b32 v2, 7, v0')
        a(f'v_min_u32 v2, L_codeend-L_pc-4, v2')
        a(f'global_load_dword v255, v2, s[14:15]')
        a(f'v_add_u32 v2, 32768, v2')
        a(f'v_min_u32 v2, L_codeend-L_pc-4, v2')
        a(f'global_load_dword v254, v2, s[14:15]')
        a.vmq = []
        a.label('L_nocpf')
    a(f's_load_dwordx16 s[32:47], s[0:1], 64')
    a(f's_load_dwordx2 {sp(S_WS)}, s[0:1], 128')
    a(f'v_lshrrev_b32 v2, 6, v0')
    a(f'v_and_b32 v1, 63, v0')
    a(f'v_readfirstlane_b32 s{S_W}, v2')
    a(f's_and_b32 s{S_XCD}, s2, 7')
    a(f's_lshr_b32 s{S_LOC}, s2, 3')
    a(f's_mul_i32 s{S_CW}, s{S_XCD}, 28')
    a(f's_add_u32 s{S_CW}, s{S_CW}, s{S_LOC}')
    if PROF:
        a(f's_lshl_b32 s100, s2, 2')
        a(f's_add_u32 s100, s100, s{S_W}')
        a(f's_lshl_b32 s100, s100, 6')
        a(f's_add_u32 s100, s100, {WS_PROF}')
    a(f's_lshr_b32 s{S_CH}, s{S_W}, 1')
    a(f's_and_b32 s{S_PAR}, s{S_W}, 1')
    a(f's_mul_i32 s6, s{S_LOC}, 37')
    a(f's_lshr_b32 s6, s6, 8')
    a(f's_mul_i32 s7, s6, 7')
    a(f's_sub_u32 s{S_FT}, s{S_LOC}, s7')
    a(f's_lshl_b32 s{S_TT}, s{S_XCD}, 2')
    a(f's_add_u32 s{S_TT}, s{S_TT}, s6')

def stats_loads(a):
    a(f's_lshl_b32 s{S_R0}, s{S_XCD}, 5')
    a(f's_and_b32 s6, s{S_LOC}, 30')
    a(f's_add_u32 s{S_R0}, s{S_R0}, s6')
    a(f's_and_b32 s6, s{S_LOC}, 1')
    a(f's_lshl_b32 s6, s6, 1')
    a(f's_add_u32 s9, s6, s{S_CH}')
    a(f's_lshl_b32 s6, s{S_R0}, 2')
    a(f's_add_u32 s6, s6, s9')
    a(f's_mul_i32 s6, s6, 1792')
    a(f'v_lshrrev_b32 v2, 5, v1')
    a(f'v_mul_u32_u24 v2, {8*896 - 1024}, v2')
    a(f'v_lshl_add_u32 v3, v1, 5, s6')
    a(f'v_add_u32 v3, v2, v3')
    for i in range(4, 20): a(f'v_mov_b32 v{i}, 0')
    a(f's_mov_b32 exec_lo, 0x0fffffff')
    a(f's_mov_b32 exec_hi, 0x0fffffff')
    a(f'global_load_dwordx4 v[4:7], v3, {sp(S_AU)}')
    a(f'global_load_dwordx4 v[8:11], v3, {sp(S_AU)} offset:16')
    a(f'global_load_dwordx4 v[12:15], v3, {sp(S_AU)} offset:896')
    a(f'global_load_dwordx4 v[16:19], v3, {sp(S_AU)} offset:912')
    a(f's_mov_b64 exec, -1')

def tag_setup(a):
    a(f's_add_u32 s{S_E}, s{S_E}, 1')
    a(f's_mul_i32 s{S_TAG}, s{S_E}, 0x9E3779B1')
    a(f's_add_u32 s{S_TAG}, s{S_TAG}, 0x7F4A7C15')

def stats(a):
    a(f'v_mov_b32 v2, 0x3f803f80')
    for i in range(8):
        for r, base in ((0, 4), (1, 12)):
            s, q = 20 + 2 * r, 21 + 2 * r
            a(f'v_dot2_f32_bf16 v{s}, v{base+i}, v2, ' + ('0' if i == 0 else f'v{s}'))
            a(f'v_dot2_f32_bf16 v{q}, v{base+i}, v{base+i}, ' + ('0' if i == 0 else f'v{q}'))
    for ctl in ('row_shr:1 row_mask:0xf bank_mask:0xf bound_ctrl:0', 'row_shr:2 row_mask:0xf bank_mask:0xf bound_ctrl:0',
                'row_shr:4 row_mask:0xf bank_mask:0xf bound_ctrl:0', 'row_shr:8 row_mask:0xf bank_mask:0xf bound_ctrl:0',
                'row_bcast:15 row_mask:0xa bank_mask:0xf'):
        for v in (20, 21, 22, 23):
            a(f'v_add_f32_dpp v{v}, v{v}, v{v} {ctl}')
    a(f's_mov_b32 s8, 0x3b124925')
    a(f'v_pk_mul_f32 v[20:21], v[20:21], s[8:9] op_sel_hi:[1,0]')
    a(f'v_pk_mul_f32 v[22:23], v[22:23], s[8:9] op_sel_hi:[1,0]')
    a(f's_mov_b32 s8, 0x3727c5ac')
    a(f'v_fma_f32 v21, -v20, v20, v21')
    a(f'v_fma_f32 v23, -v22, v22, v23')
    a(f'v_max_f32 v21, 0, v21')
    a(f'v_max_f32 v23, 0, v23')
    a(f'v_cvt_pk_bf16_f32 v4, v21, v23')
    a(f'v_lshrrev_b32 v2, 5, v1')
    a(f'v_lshlrev_b32 v21, 16, v4')
    a(f'v_and_b32 v23, 0xffff0000, v4')
    a(f'v_add_f32 v21, s8, v21')
    a(f'v_add_f32 v23, s8, v23')
    a(f'v_cvt_pk_bf16_f32 v4, v21, v23')
    a(f's_lshl_b32 s8, s{S_R0}, 4')
    a(f's_lshl_b32 s9, s9, 13')
    a(f's_add_u32 s8, s8, s9')
    a(f'v_lshlrev_b32 v21, 16, v4')
    a(f'v_and_b32 v23, 0xffff0000, v4')
    a(f'v_sqrt_f32 v21, v21')
    a(f'v_sqrt_f32 v23, v23')
    a(f's_add_u32 s8, s8, {WS_STATS}')
    a(f'v_cvt_pk_bf16_f32 v8, v20, v22')
    a(f'v_cvt_pk_bf16_f32 v4, v21, v23')
    a(f'v_lshl_add_u32 v2, v2, 4, s8')
    a(f'v_add_u32 v3, 4096, v2')
    a(f'v_and_b32 v5, 0xffff0000, v4')
    a(f'v_lshlrev_b32 v4, 16, v4')
    a(f'v_rcp_f32 v5, v5')
    a(f'v_rcp_f32 v4, v4')
    a(f'v_and_b32 v9, 0xffff0000, v8')
    a(f'v_lshlrev_b32 v8, 16, v8')
    for r in (6, 7, 10, 11): a(f'v_mov_b32 v{r}, s{S_TAG}')
    a(f'v_pk_mul_f32 v[8:9], v[8:9], v[4:5] neg_lo:[1,0] neg_hi:[1,0]')
    a(f's_mov_b32 exec_lo, 0x80000000')
    a(f's_mov_b32 exec_hi, 0x80000000')
    a(f'global_store_dwordx4 v2, v[4:7], {sp(S_WS)} sc1')
    a(f'global_store_dwordx4 v3, v[8:11], {sp(S_WS)} sc1')
    a(f's_mov_b64 exec, -1')

def xt_loads(a):
    a(f's_lshl_b32 s6, s{S_TT}, 1')
    a(f's_add_u32 s6, s6, s{S_CH}')
    a(f's_mul_i32 s6, s6, {32*896}')
    a(f's_lshl_b32 s7, s{S_FT}, 1')
    a(f's_add_u32 s7, s7, s{S_PAR}')
    a(f's_lshl_b32 s7, s7, 6')
    a(f's_add_u32 s6, s6, s7')
    a(f'v_lshrrev_b32 v33, 2, v1')
    a(f'v_mul_u32_u24 v33, 896, v33')
    a(f'v_and_b32 v34, 3, v1')
    a(f'v_lshl_add_u32 v33, v34, 4, v33')
    a(f'v_add_u32 v33, s6, v33')
    a(f's_lshl_b32 s7, s{S_W}, 11')
    a(f's_add_u32 m0, s7, {L_XT}')
    a(f'v_add_u32 v34, {16*896 - 1024}, v33')
    a(f'global_load_lds_dwordx4 v33, {sp(S_AU)}', tag='xt')
    a(f'global_load_lds_dwordx4 v34, {sp(S_AU)} offset:1024', tag='xt')

def xt_addr(a):
    a(f'v_lshrrev_b32 v36, 2, v1')
    a(f'v_bfe_u32 v37, v1, 1, 1')
    a(f'v_lshl_add_u32 v36, v37, 4, v36')
    a(f'v_lshlrev_b32 v36, 6, v36')
    a(f'v_and_b32 v37, 1, v1')
    a(f'v_lshl_add_u32 v36, v37, 3, v36')
    a(f's_lshl_b32 s7, s{S_W}, 11')
    a(f's_add_u32 s7, s7, {L_XT}')
    a(f'v_add_u32 v36, s7, v36')
    a(f's_lshl_b32 s6, s{S_FT}, 1')
    a(f's_add_u32 s6, s6, s{S_PAR}')
    a(f's_mul_i32 s6, s6, {32*XTS}')
    a(f's_lshl_b32 s7, s{S_TT}, 1')
    a(f's_add_u32 s7, s7, s{S_CH}')
    a(f's_lshl_b32 s7, s7, 7')
    a(f's_add_u32 s6, s6, s7')
    a(f's_add_u32 s6, s6, {WS_XT}')
    a(f'v_and_b32 v37, 7, v1')
    a(f'v_mul_u32_u24 v37, {XTS}, v37')
    a(f'v_and_b32 v38, 48, v1')
    a(f'v_add3_u32 v37, v37, v38, s6')
    a(f'v_and_b32 v38, 8, v1')
    a(f'v_lshl_add_u32 v37, v38, 3, v37')

def xt_publish(a, R):
    a.wait_vm_tag('xt')
    for q in range(4): a(f'ds_read_b64_tr_b16 v[{R+4*q}:{R+4*q+1}], v36 offset:{16*q}')
    for q in range(4): a(f'v_mov_b32 v{R+4*q+3}, s{S_TAG}')
    for q in range(4):
        a(f'v_mov_b32 v{R+4*q+2}, v{R+4*q+1}')
        a(f'v_mov_b32 v{R+4*q+1}, s{S_TAG}')
        a(f'global_store_dwordx4 v37, v[{R+4*q}:{R+4*q+3}], {sp(S_WS)} sc1')
        if q < 3: a(f'v_add_u32 v37, {8*XTS}, v37')

def odd_only(a, name, fn):
    a(f's_cmp_eq_u32 s{S_PAR}, 0')
    a(f's_cbranch_scc1 L_{name}')
    st = a.state()
    fn(a)
    a.label(f'L_{name}')
    return st

def spare(a):
    a.label('L_spare')
    a(f's_sub_u32 s12, s{S_LOC}, 28')
    a(f's_lshl_b32 s10, s12, 3')
    a(f's_add_u32 s10, s10, s{S_XCD}')
    a(f's_load_dword s{S_E}, {sp(S_WS)}, {WS_EPOCH}')
    a(f'v_min_u32 v24, 223, v0')
    a(f'v_lshlrev_b32 v24, 2, v24')
    a(f'global_load_dword v25, v24, {sp(S_C)}')
    a.force_wait(vm=0) if False else None
    odd_only(a, 'sp_ld', stats_loads)
    a(f's_cmp_ge_u32 s10, 28')
    a(f's_cbranch_scc1 L_spare_idle')
    st = a.state()
    a(f'v_lshrrev_b32 v29, 3, v1')
    a(f'v_mul_u32_u24 v26, 7, v29')
    a(f's_and_b32 s13, s10, 1')
    a(f's_mul_i32 s11, s13, 224')
    a(f's_mul_i32 s14, s{S_W}, 56')
    a(f's_add_u32 s11, s11, s14')
    a(f'v_add_u32 v26, s11, v26')
    a(f'v_mul_u32_u24 v27, 5376, v26')
    a(f'v_and_b32 v28, 7, v1')
    a(f'v_lshlrev_b32 v28, 4, v28')
    a(f's_lshr_b32 s11, s10, 1')
    a(f's_lshl_b32 s11, s11, 7')
    a(f'v_add3_u32 v27, v27, v28, s11')
    def wa(a):
        for i in range(7):
            a(f'global_load_dwordx4 v[{64+4*i}:{67+4*i}], v27, {sp(S_WM)}')
            if i < 6: a(f'v_add_u32 v27, 5376, v27')
    if not OPT.get('wlate', 1): wa(a)
    EST(a, 9)
    a(f'v_mul_u32_u24 v30, 14, v29')
    a(f's_mul_i32 s11, s{S_W}, 112')
    a(f'v_add_u32 v30, s11, v30')
    a(f'v_mul_u32_u24 v31, 5376, v30')
    a(f's_lshl_b32 s11, s10, 7')
    a(f's_add_u32 s11, s11, {14*128}')
    a(f'v_add3_u32 v31, v31, v28, s11')
    a(f'v_lshlrev_b32 v26, 2, v26')
    a(f'v_lshlrev_b32 v30, 2, v30')
    a(f'v_lshrrev_b32 v29, 3, v0')
    a(f'v_lshlrev_b32 v29, 8, v29')
    a(f'v_lshl_add_u32 v29, v28, 1, v29')
    a(f'v_and_b32 v200, 31, v1')
    a(f'v_lshlrev_b32 v201, 3, v200')
    a(f'v_lshrrev_b32 v202, 5, v1')
    a(f'v_lshl_add_u32 v202, v202, 12, v201')
    assert OPT.get('wlate', 1)
    a(f's_cmp_eq_u32 s{S_PAR}, 0')
    a(f's_cbranch_scc1 L_sp_c0')
    a(f's_waitcnt vmcnt(4)')
    a(f's_branch L_sp_c1')
    a.label('L_sp_c0')
    a(f's_waitcnt vmcnt(0)')
    a.label('L_sp_c1')
    a.vmq = a.vmq[1:]
    a(f'v_lshlrev_b32 v34, 16, v25')
    a(f'v_and_b32 v35, 0xffff0000, v25')
    if OPT.get('wlate', 1): wa(a)
    a(f's_mov_b32 s8, 0xbfb8aa3b')
    a(f'v_mul_f32 v32, s8, v34')
    a(f'v_mul_f32 v33, s8, v35')
    a(f'v_exp_f32 v32, v32')
    a(f'v_exp_f32 v33, v33')
    a(f'v_add_f32 v32, 1.0, v32')
    a(f'v_add_f32 v33, 1.0, v33')
    a(f'v_rcp_f32 v32, v32')
    a(f'v_rcp_f32 v33, v33')
    a(f'v_mul_f32 v34, v34, v32')
    a(f'v_mul_f32 v35, v35, v33')
    a(f'v_cvt_pk_bf16_f32 v34, v34, v35')
    a(f'v_and_b32 v32, 0xffff, v34')
    a(f'v_lshrrev_b32 v33, 16, v34')
    a(f'v_lshlrev_b32 v24, 1, v24')
    a(f'ds_write_b64 v24, v[32:33]')
    EST(a, 1)
    tag_setup(a)
    EST(a, 2)
    a.barrier()
    EST(a, 3)
    for i in range(7): a(f'ds_read_b32 v{34+i}, v26 offset:{4*i}')
    acc = 176
    def dots(a, n):
        for i in range(n): a(f'v_lshlrev_b32 v{48+i}, 16, v{34+i}')
        for i in range(n):
            for k in range(4):
                w = 64 + 4 * i + k
                a(f'v_dot2_f32_bf16 v{acc+2*k}, v{w}, v{34+i}, ' + ('0' if i == 0 else f'v{acc+2*k}'))
                a(f'v_dot2_f32_bf16 v{acc+2*k+1}, v{w}, v{48+i}, ' + ('0' if i == 0 else f'v{acc+2*k+1}'))
    a(f's_cmp_eq_u32 s{S_PAR}, 0')
    a(f's_cbranch_scc1 L_sp_even')
    st4 = a.state()
    stats(a)
    EST(a, 10)
    dots(a, 7)
    a(f's_branch L_sp_join')
    a.label('L_sp_even')
    a.set_state(st4)
    dots(a, 7)
    a.label('L_sp_join')
    a.vmq = []; a.lgq = []; a.hist = []
    for task, n in ((0, 7), (1, 14)):
        if task == 1:
            for i in range(14):
                a(f'global_load_dwordx4 v[{64+4*i}:{67+4*i}], v31, {sp(S_WM)}')
                if i < 13: a(f'v_add_u32 v31, 5376, v31')
            for i in range(7): a(f'ds_read_b64 v[{34+2*i}:{35+2*i}], v30 offset:{8*i}')
            dots(a, 14)
        if task == 0: EST(a, 11)
        a(f'ds_write_b128 v29, v[{acc}:{acc+3}] offset:{2048+8192*task}')
        a(f'ds_write_b128 v29, v[{acc+4}:{acc+7}] offset:{2048+8192*task+16}')
        a.barrier()
        if task == 0: EST(a, 12)
        lab = f'L_spare_red{task}'
        a(f's_cmp_lg_u32 s{S_W}, 0')
        a(f's_cbranch_scc1 {lab}')
        st2 = a.state()
        for i in range(16):
            a(f'ds_read_b64 v[{204+2*i}:{205+2*i}], v202 offset:{2048+8192*task+256*i}')
        for i in range(1, 16):
            a(f'v_pk_add_f32 v[204:205], v[204:205], v[{204+2*i}:{205+2*i}]')
        a(f'v_mov_b32 v206, v204')
        a(f'v_mov_b32 v207, v205')
        a(f'v_permlane32_swap_b32 v204, v206')
        a(f'v_permlane32_swap_b32 v205, v207')
        a(f'v_pk_add_f32 v[204:205], v[204:205], v[206:207]')
        if task == 0:
            a(f'v_mov_b32 v206, s{S_TAG}')
            a(f'v_mov_b32 v207, s{S_TAG}')
            a(f's_mul_i32 s11, s13, 7168')
            a(f's_lshr_b32 s14, s10, 1')
            a(f's_lshl_b32 s14, s14, 9')
            a(f's_add_u32 s11, s11, s14')
            a(f's_add_u32 s11, s11, {WS_MODA}')
            a(f'v_lshl_add_u32 v203, v200, 4, s11')
            a(f's_mov_b32 exec_hi, 0')
            a(f'global_store_dwordx4 v203, v[204:207], {sp(S_WS)} sc1')
        else:
            a(f'v_cvt_pk_bf16_f32 v204, v204, v205')
            a(f'v_mov_b32 v205, s{S_TAG}')
            a(f's_lshl_b32 s11, s10, 8')
            a(f's_add_u32 s11, s11, {WS_MODG + 448*8}')
            a(f'v_add_u32 v203, s11, v201')
            a(f's_mov_b32 exec_hi, 0')
            a(f'global_store_dwordx2 v203, v[204:205], {sp(S_WS)} sc1')
        a(f's_mov_b32 exec_hi, -1')
        a.label(lab)
        a.set_state(st2); a.hist = []
        EST(a, 13 + task)
    a(f's_branch L_spare_end')
    a.label('L_spare_idle')
    a.set_state(st)
    EST(a, 9)
    tag_setup(a)
    a(f's_barrier')
    odd_only(a, 'sp_st2', stats)
    EST(a, 10)
    a.label('L_spare_end')
    a.vmq = []; a.lgq = []; a.hist = []
    if OPT.get('early'):
        a.force_wait(vm=0, lgkm=0)
        EST(a, 15)
        a.force_wait(vm=0, lgkm=0)
        stamps_out(a)
    a(f's_endpgm')

def addr_setup():
    L = []
    L.append(f'v_lshrrev_b32 v236, 5, v1')
    L.append(f'v_bfe_u32 v237, v1, 2, 2')
    L.append(f'v_lshl_add_u32 v236, v236, 2, v237')
    L.append(f'v_lshlrev_b32 v236, 7, v236')
    L.append(f'v_bfe_u32 v238, v1, 4, 1')
    L.append(f'v_lshl_add_u32 v236, v238, 5, v236')
    L.append(f'v_and_b32 v238, 3, v1')
    L.append(f'v_lshl_add_u32 v236, v238, 3, v236')
    L.append(f'v_lshrrev_b32 v237, 1, v237')
    L.append(f'v_lshl_add_u32 v{V_T0}, v237, 6, v236')
    L.append(f'v_xor_b32 v{V_T1}, 64, v{V_T0}')
    L.append(f's_mul_i32 s6, s{S_W}, {SL}')
    L.append(f'v_add_u32 v{V_A0}, s6, v{V_T0}')
    L.append(f'v_add_u32 v{V_A1}, s6, v{V_T1}')
    L.append(f's_lshl_b32 s6, s{S_W}, 13')
    L.append(f's_add_u32 s6, s6, {L_H2}')
    L.append(f'v_add_u32 v{V_X0}, s6, v{V_T0}')
    L.append(f'v_add_u32 v{V_X1}, s6, v{V_T1}')
    L.append(f'v_lshrrev_b32 v236, 3, v1')
    L.append(f'v_bfe_u32 v237, v1, 4, 1')
    L.append(f'v_lshlrev_b32 v237, 2, v237')
    L.append(f'v_and_b32 v238, 7, v1')
    L.append(f'v_xor_b32 v237, v237, v238')
    L.append(f'v_lshlrev_b32 v237, 4, v237')
    L.append(f'v_mul_u32_u24 v238, 3584, v236')
    L.append(f'v_add_u32 v{V_D1}, v237, v238')
    L.append(f'v_mul_u32_u24 v238, 896, v236')
    L.append(f'v_add_u32 v{V_D2}, v237, v238')
    for i in range(1, 4):
        L.append(f'v_add_u32 v{V_D1+i}, {i*(8*3584-1024)}, v{V_D1}')
        L.append(f'v_add_u32 v{V_D2+i}, {i*(8*896-1024)}, v{V_D2}')
    L.append(f's_lshl_b32 s6, s{S_FT}, 9')
    L.append(f's_lshl_b32 s7, s{S_W}, 7')
    L.append(f's_add_u32 s6, s6, s7')
    L.append(f's_add_u32 s{SRD1}, s{S_W1}, s6')
    L.append(f's_addc_u32 s{SRD1+1}, s{S_W1+1}, 0')
    L.append(f's_sub_u32 s{SRD1+2}, {448*3584}, s6')
    L.append(f's_mov_b32 s{SRD1+3}, 0x20000')
    L.append(f's_mul_i32 s6, s{S_W}, {448*896}')
    L.append(f's_lshl_b32 s7, s{S_FT}, 7')
    L.append(f's_add_u32 s6, s6, s7')
    L.append(f's_add_u32 s{SRD2}, s{S_W2}, s6')
    L.append(f's_addc_u32 s{SRD2+1}, s{S_W2+1}, 0')
    L.append(f's_sub_u32 s{SRD2+2}, {1792*896}, s6')
    L.append(f's_mov_b32 s{SRD2+3}, 0x20000')
    return L

def dma_list(srd, vd, rs, ks0, nks, slice_bytes, lds_base, tag):
    L = [f's_mul_i32 s15, s{S_W}, {slice_bytes}', f's_add_u32 s15, s15, {lds_base}']
    n = 2 * nks
    if OPT.get('e3') and tag in ('w2c', 'w2d', 'w2e'): srd = 96 if False else srd; rs = 0; ks0 = 0; vd = V_T0
    for g in range(0, n, 4):
        L.append(f's_add_u32 m0, s15, {g*1024}')
        L.append(f's_mov_b32 s9, {(ks0*16 + g*8)*rs}')
        for i in range(min(4, n - g)):
            L.append((f'buffer_load_dwordx4 v{vd + (0 if vd == V_T0 else i)}, s[{srd}:{srd+3}], s9 offen offset:{1024*i} lds', tag))
    return L

def dmas(a, L, n):
    while L and n > 0:
        x = L.pop(0); emit1(a, x)
        if isinstance(x, tuple): n -= 1

def tr_list(dst, va, ks_list, local0, tag=None):
    L = []
    for ks in ks_list:
        for ct in range(2):
            k, r = dst(ct, ks)
            for sec in range(2):
                L.append((f'ds_read_b64_tr_b16 {k}[{r+2*sec}:{r+2*sec+1}], v{va[ct]} offset:{(ks-local0)*2048 + sec*1024}', tag))
    return L

def tagcheck(a, tagregs, vt):
    first = True
    for r in tagregs:
        if first: a(f'v_xor_b32 v{vt}, s{S_TAG}, v{r}'); first = False
        else: a(f'v_bitop3_b32 v{vt}, v{r}, s{S_TAG}, v{vt} bitop3:0xbe')
    a(f'v_cmp_ne_u32 vcc, 0, v{vt}')

def poll(a, name, loads, tagregs, vt=2, preissued=False):
    if not preissued:
        for l in loads: a(l)
    tagcheck(a, tagregs, vt)
    a(f's_mov_b32 s8, 0')
    a(f's_cbranch_vccz L_{name}_done')
    st = a.state()
    a.label(f'L_{name}')
    if OPT.get('slp', 4): a(f's_sleep {OPT.get("slp", 4)}')
    for l in loads: a(l)
    tagcheck(a, tagregs, vt)
    a(f's_add_u32 s8, s8, 1')
    a(f's_cbranch_vccz L_{name}_done')
    a(f's_cmp_lt_u32 s8, 0x40000')
    a(f's_cbranch_scc1 L_{name}')
    a.label(f'L_{name}_done')
    h = a.hist
    a.set_state(st); a.hist = h

def flag_ops(vaddr, vtag):
    return [f's_mov_b64 exec, 1', f'global_store_dword v{vaddr}, v{vtag}, {sp(S_WS)} sc1', f's_mov_b64 exec, -1']

def w1dst(ct, ks): return ('a', (ct * 28 + ks) * 4)

V_X = 24
V_PAR = 208
V_GA = 40
V_XA = 38
def addr1(a, mid):
    for i in range(4): a(f'v_mov_b32 v{56+i}, 0')
    a(f'v_min_u32 v32, 29, v1')
    a(f's_mul_i32 s6, s{S_PAR}, {UR_CH}')
    a(f's_add_u32 s6, s6, {L_UR + 4096}')
    a(f'v_lshl_add_u32 v32, v32, 4, s6')
    a(f'ds_write_b128 v32, v[56:59]')
    a(f'v_and_b32 v32, 1, v1')
    a(f'v_lshlrev_b32 v32, 4, v32')
    a(f'v_bfe_u32 v33, v1, 1, 1')
    a(f'v_mul_u32_u24 v33, {KC_O}, v33')
    a(f'v_add_u32 v32, v32, v33')
    a(f'v_bfe_u32 v33, v1, 2, 1')
    a(f'v_mul_u32_u24 v33, {KC_CH}, v33')
    a(f'v_add_u32 v32, v32, v33')
    a(f'v_add_u32 v32, {L_KC}, v32')
    a(f'ds_write_b128 v32, v[56:59]')
    a(f'v_and_b32 v32, 1, v1')
    a(f'v_mul_u32_u24 v32, {T_CH}, v32')
    a(f'v_add_u32 v32, {L_T + 64}, v32')
    a(f'ds_write_b64 v32, v[56:57]')
    a(f's_mul_i32 s6, s{S_CH}, {KG_CH}')
    a(f'v_lshl_add_u32 v51, v1, 4, s6')
    for i in range(4): a(f'v_mov_b32 v{56+i}, 0x3f80')
    a(f'ds_write_b128 v51, v[56:59]')
    a(f'v_lshlrev_b32 v32, 3, v0')
    for e in range(9): a(f'v_add_u32 v{V_GA+e}, {e-1}, v32')
    a(f'v_max_i32 v{V_GA}, 0, v{V_GA}')
    for e in range(9): a(f'v_cvt_f32_u32 v{V_GA+e}, v{V_GA+e}')
    for e in range(9): a(f'v_cvt_pk_bf16_f32 v{V_GA+e}, v{V_GA+e}, v{V_GA+e}')
    for e in range(9): a(f'v_and_b32 v{V_GA+e}, 0xffff0000, v{V_GA+e}')
    for e in range(9): a(f'v_cvt_u32_f32 v{V_GA+e}, v{V_GA+e}')
    for e in range(9):
        r = V_GA + e
        if e == OPT.get('mid', 8): mid(a)
        a(f'v_lshrrev_b32 v32, 8, v{r}')
        a(f'v_and_b32 v33, 7, v{r}')
        a(f'v_min_u32 v34, 2, v32')
        a(f'v_lshrrev_b32 v33, v34, v33')
        a(f'v_lshl_add_u32 v34, v32, 1, 8')
        a(f'v_add_u32 v35, 12, v32')
        a(f'v_lshlrev_b32 v32, 3, v32')
        a(f'v_min3_u32 v34, v34, v35, v32')
        a(f'v_add_u32 v33, v33, v34')
        a(f'v_bfe_u32 v34, v{r}, 3, 5')
        a(f'v_mul_u32_u24 v34, {T_ROW}, v34')
        a(f'v_lshl_add_u32 v{r}, v33, 1, v34')
        a(f'v_add_u32 v{r}, {L_T}, v{r}')
    a(f'v_cmp_eq_u32 vcc, 0, v0')
    a(f'v_mov_b32 v32, {L_T + 64}')
    a(f'v_cndmask_b32 v{V_GA}, v{V_GA}, v32, vcc')
    emit(a, addr_setup())
    a(f'v_and_b32 v49, 15, v1')
    a(f'v_lshrrev_b32 v50, 4, v1')
    a(f's_mul_i32 s6, s{S_CH}, {KG_CH}')
    a(f'v_mul_u32_u24 v52, {KG_ROW}, v49')
    a(f'v_lshl_add_u32 v52, v50, 8, v52')
    a(f'v_add_u32 v52, s6, v52')
    a(f's_mul_i32 s7, s{S_PAR}, {16*KG_ROW}')
    a(f'v_add_u32 v53, s7, v52')
    a(f's_mul_i32 s6, s{S_CH}, {T_CH}')
    a(f's_mul_i32 s7, s{S_PAR}, {16*T_ROW}')
    a(f's_add_u32 s6, s6, s7')
    a(f's_add_u32 s6, s6, {L_T}')
    a(f'v_mul_u32_u24 v54, {T_ROW}, v49')
    a(f'v_lshl_add_u32 v54, v50, 3, v54')
    a(f'v_add_u32 v54, s6, v54')
    a(f'v_lshlrev_b32 v55, 4, v0')
    a(f'v_add_u32 v55, {L_KC + 32}, v55')
    a(f'v_add_u32 v56, 2, v49')
    a(f'v_and_b32 v56, 0x1e, v56')
    a(f'v_lshlrev_b32 v56, 1, v56')
    a(f'v_lshl_add_u32 v56, v50, 4, v56')
    a(f'v_and_b32 v57, 1, v49')
    a(f'v_xor_b32 v57, 1, v57')
    a(f'v_mul_u32_u24 v57, {KC_O}, v57')
    a(f'v_add_u32 v56, v56, v57')
    a(f's_mul_i32 s6, s{S_CH}, {KC_CH}')
    a(f's_lshl_b32 s7, s{S_PAR}, 6')
    a(f's_add_u32 s6, s6, s7')
    a(f's_add_u32 s6, s6, {L_KC}')
    a(f'v_add_u32 v56, s6, v56')
    for k in range(1, 4): a(f'v_add_u32 v{56+k}, {1024*k}, v56')
    a(f's_mul_i32 s6, s{S_CH}, {UR_CH}')
    a(f's_add_u32 s6, s6, s7')
    a(f's_add_u32 s6, s6, {L_UR + 480}')
    a(f'v_lshlrev_b32 v60, 5, v49')
    a(f'v_sub_u32 v60, s6, v60')
    a(f'v_lshl_add_u32 v60, v50, 4, v60')
    a(f'v_lshlrev_b32 v61, 4, v0')
    a(f'v_sub_u32 v61, {L_UR + 4080}, v61')
    a(f'v_lshlrev_b32 v62, 4, v0')
    a(f'v_add_u32 v62, {WS_STATS + 4096}, v62')
    for k in range(1, 4): a(f'v_add_u32 v{220+k}, {8192*k}, v62')
    a(f's_mul_i32 s6, s{S_CW}, {2*XTS}')
    a(f's_add_u32 s6, s6, {WS_XT}')
    a(f'v_lshl_add_u32 v30, v0, 5, s6')
    a(f'v_add_u32 v31, {XTS}, v30')
    xt_addr(a)
    a(f'v_and_b32 v63, 1, v1')
    a(f'v_mul_u32_u24 v63, 7168, v63')
    a(f'v_bfe_u32 v32, v1, 1, 1')
    a(f'v_mul_u32_u24 v32, {224*16}, v32')
    a(f's_lshl_b32 s6, s{S_CW}, 4')
    a(f's_add_u32 s6, s6, {WS_MODA}')
    a(f'v_add3_u32 v63, v63, v32, s6')

def kgen(role):
    K = []
    K.append(f's_lshl_b32 s6, s{S_CH}, 4')
    K.append(f's_lshr_b32 s6, s{S_LDTV}, s6')
    K.append(f's_lshl_b32 s6, s6, 16')
    K.append(f'v_mov_b32 v24, s6')
    K.append(f'v_mul_f32 v24, 0x3fb8aa3b, v24')
    K.append(f'v_exp_f32 v24, v24')
    B = [64 + 28 * j for j in range(4)]
    ZR, ZF, W_, E1, E2, E4, E8, E256, E1K, P_, G_, G8, G12, T_, T2 = 0, 1, 2, 4, 6, 8, 4, 10, 12, 6, 14, 16, 18, 20, 22
    def un(j, d, arr):
        src = V_PAR + 2 * arr + (j >> 1)
        K.append(f'v_lshlrev_b32 v{d}, 16, v{src}' if j % 2 == 0 else f'v_and_b32 v{d}, 0xffff0000, v{src}')
    for j in range(4):
        un(j, B[j] + ZR, 0); un(j, B[j] + ZF, 1)
        if j == 0:
            K.append(f'v_cvt_pk_bf16_f32 v24, v24, v24')
            K.append(f'v_and_b32 v24, 0xffff0000, v24')
    for j in range(4):
        b = B[j]
        K.append(f'v_pk_mul_f32 v[{b+ZR}:{b+ZF}], v[{b+ZR}:{b+ZF}], v[24:25] op_sel_hi:[1,0]')
    K.append(f's_mov_b32 s6, 0x3fb8aa3b')
    K.append(f's_mov_b32 s7, 0x3e22f983')
    for j in range(4):
        b = B[j]
        K.append(f'v_pk_mul_f32 v[{b+ZR}:{b+ZF}], v[{b+ZR}:{b+ZF}], s[6:7]')
    def direct(dst, k):
        kf = {1: None, 8: '0x41000000', 256: '0x43800000', 1024: '0x44800000'}[k]
        if kf:
            K.append(f's_mov_b32 s6, {kf}')
            for j in range(4):
                b = B[j]
                K.append(f'v_pk_mul_f32 v[{b+T_}:{b+T_+1}], v[{b+ZR}:{b+ZF}], s[6:7] op_sel_hi:[1,0]')
        for j in range(4):
            b = B[j]
            K.append(f'v_fract_f32 v{b+T_+1}, v{b+(T_+1 if kf else ZF)}')
            K.append(f'v_exp_f32 v{b+T_}, v{b+(T_ if kf else ZR)}')
        for j in range(4):
            b = B[j]
            K.append(f'v_cos_f32 v{b+dst}, v{b+T_+1}')
            K.append(f'v_sin_f32 v{b+dst+1}, v{b+T_+1}')
        for j in range(4):
            b = B[j]
            K.append(f'v_pk_mul_f32 v[{b+dst}:{b+dst+1}], v[{b+dst}:{b+dst+1}], v[{b+T_}:{b+T_+1}] op_sel:[0,0] op_sel_hi:[1,0]')
    def put(row, src):
        o = 176 + 4 * (row % 2)
        for j in range(4):
            b = B[j]
            K.append(f'v_cvt_pk_bf16_f32 v{o+j}, v{b+src}, {"-" if role else ""}v{b+src+1}')
        K.append(f'ds_write_b128 v51, v[{o}:{o+3}] offset:{row*KG_ROW}')
    def mul4(d, x, y):
        c = [cmul(B[j] + d, B[j] + x, B[j] + y, B[j] + T2) for j in range(4)]
        K.extend([c[j][0] for j in range(4)] + [c[j][1] for j in range(4)])
    if role == 0:
        direct(E8, 8)
        put(1, E8)
        mul4(P_, E8, E8); put(2, P_)
        for i in range(3, 32):
            mul4(P_, P_, E8); put(i, P_)
    else:
        direct(E1, 1)
        direct(E256, 256)
        mul4(E2, E1, E1); mul4(E4, E2, E2)
        K.append('MARK')
        for j in range(4):
            b = B[j]
            un(j, b + T_, 2); un(j, b + T_ + 1, 3); un(j, b + G8, 4); un(j, b + G8 + 1, 5)
        for j in range(4):
            b = B[j]
            K.append(f'v_pk_mul_f32 v[{b+T_}:{b+T_+1}], v[{b+T_}:{b+T_+1}], v[24:25] op_sel_hi:[1,0]')
        mul4(W_, G8, T_)
        put(32, W_)
        mul4(G_, W_, E1); put(33, G_)
        for jq in range(2, 8):
            mul4(G_, G_, E1); put(32 + jq, G_)
        mul4(G8, W_, E256); put(40, G8)
        mul4(G_, G8, E2); put(41, G_)
        mul4(G_, G_, E2); put(42, G_)
        mul4(G_, G_, E2); put(43, G_)
        mul4(G12, G8, E256); put(44, G12)
        mul4(G_, G12, E4); put(45, G_)
        mul4(G12, G12, E256); put(46, G12)
        mul4(G_, G12, E4); put(47, G_)
        mul4(G8, G12, E256); put(48, G8)
        mul4(G_, G8, E256); put(49, G_)
        mul4(G_, G_, E256); put(50, G_)
        mul4(G_, G_, E256); put(51, G_)
        mul4(G_, G_, E256); put(52, G_)
    return K

def phase1(a):
    a(f's_lshl_b32 s6, s{S_CW}, 1')
    a(f's_add_u32 s6, s6, s{S_CH}')
    a(f's_lshl_b32 s6, s6, 9')
    a(f'v_lshl_add_u32 v32, v1, 3, s6')
    for i, s in enumerate((S_ARE, S_AIM)):
        a(f'global_load_dwordx2 v[{V_PAR+2*i}:{V_PAR+2*i+1}], v32, {sp(s)}')
    a(f's_lshl_b32 s7, s{S_CW}, 2')
    a(f's_load_dword s{S_LDTV}, {sp(S_LDT)}, s7')
    a(f's_load_dword s{S_DSKV}, {sp(S_DSK)}, s7')
    a(f's_load_dword s{S_E}, {sp(S_WS)}, {WS_EPOCH}')
    a(f'v_mov_b32 v26, v32')
    vm_even = []
    xt_loads(a)
    vm_even = list(a.vmq)
    odd_only(a, 'noodd2', stats_loads)
    EST(a, 9)
    def mid(a):
        odd_only(a, 'noodd', lambda a: [a(f'global_load_dwordx2 v[{V_PAR+4+2*i}:{V_PAR+5+2*i}], v26, {sp(s_)}') for i, s_ in enumerate((S_BRE, S_BIM, S_CRE, S_CIM))])
        EST(a, 11)
    if OPT.get('mid', 8) < 0: mid(a)
    addr1(a, mid)
    a(f's_mul_i32 s6, s{S_CW}, 7168')
    a(f's_mul_i32 s7, s{S_CH}, 3584')
    a(f's_add_u32 s6, s6, s7')
    a(f'v_min_u32 v224, 27, v1')
    a(f'v_lshl_add_u32 v224, v224, 7, s6')
    a(f's_lshl_b32 s6, s{S_LOC}, 2')
    a(f's_add_u32 s6, s6, s{S_W}')
    a(f's_lshl_b32 s6, s6, 13')
    a(f's_add_u32 s6, s6, {192*3584}')
    a(f'v_lshl_add_u32 v225, v1, 7, s6')
    stamp(a, 1)
    a(f's_cmp_eq_u32 s{S_PAR}, 0')
    a(f's_cbranch_scc1 L_pwave')
    st = a.state()
    for role in (1, 0):
        if role == 0:
            a.label('L_pwave'); a.set_state(st); a.vmq = list(vm_even)
        K = kgen(role)
        if role == 1:
            while K[0] != 'MARK': emit1(a, K.pop(0))
            K.pop(0)
        else:
            fill(a, K, OPT.get('xtpos', 120))
        tag_setup(a)
        xt_publish(a, 184)
        if role == 1:
            stats(a)
            stamp(a, 2)
        elif PROF: a(f's_memtime s[72:73]')
        if role == 0 and OPT.get('wt', 1) == 1:
            fill(a, K, OPT.get('wtpos', 1000))
            a(f'global_load_dword v226, v224, {sp(S_W1)}')
            a(f'global_load_dword v227, v224, {sp(S_W2)}')
        emit(a, K)
        if role == 1: a(f's_branch L_kdone')
    xl = []
    a.label('L_kdone')
    a.vmq = []; a.hist = []; a.lgq = [(set(), 'ds', None)] * 15
    stamp(a, 3)
    a.barrier()
    FR = 64; RING = 8
    def kread(ks):
        r = FR + 12 * (ks % RING)
        a(f'ds_read_b128 v[{r}:{r+3}], v53 offset:{16*ks}')
        a(f'ds_read_b128 v[{r+4}:{r+7}], v52 offset:{32*KG_ROW + 16*ks}')
        a(f'ds_read_b128 v[{r+8}:{r+11}], v52 offset:{48*KG_ROW + 16*ks}')
    SG, XG = 160, 192
    pl = [f'global_load_dwordx4 v[{SG+4*i}:{SG+4*i+3}], v{62 if i < 2 else 220+i//2}, {sp(S_WS)} offset:{-4096 if i % 2 == 0 else 0} sc1' for i in range(8)]
    pl += [f'global_load_dwordx4 v[{XG+8*ch+4*i}:{XG+8*ch+4*i+3}], v{30+ch}, {sp(S_WS)} offset:{16*i} sc1' for ch in range(2) for i in range(2)]
    pl.append(f'global_load_dwordx4 v[208:211], v63, {sp(S_WS)} sc1')
    pq = list(pl)
    for ks in range(4): kread(ks)
    for k in range(16):
        if k + 4 < 16: kread(k + 4)
        if k >= OPT.get('pk', 11) and pq: a(pq.pop(0))
        q = FR + 12 * (k % RING)
        a(f'v_mfma_f32_16x16x32_bf16 v[12:15], v[{q+4}:{q+7}], v[{q}:{q+3}], ' + ('0' if k == 0 else 'v[12:15]'))
        a(f'v_mfma_f32_16x16x32_bf16 v[16:19], v[{q+8}:{q+11}], v[{q}:{q+3}], ' + ('0' if k == 0 else 'v[16:19]'))
    EST(a, 10)
    a(f'v_cvt_pk_bf16_f32 v12, v12, v13')
    a(f'v_cvt_pk_bf16_f32 v13, v14, v15')
    a(f'v_cvt_pk_bf16_f32 v16, v16, v17')
    a(f'v_cvt_pk_bf16_f32 v17, v18, v19')
    a(f'ds_write_b64 v54, v[12:13]')
    a(f'ds_write_b64 v54, v[16:17] offset:32')
    stamp(a, 4)
    a.barrier()
    for ch in range(2):
        for e in range(9):
            a(f'ds_read_u16 v{64+16*ch+e}, v{V_GA+e} offset:{ch*T_CH}')
    fill(a, pq, 4)
    for ch in range(2):
        g = 64 + 16 * ch; o = 96 + 8 * ch
        fill(a, pq, 2)
        for q in range(4):
            a(f'v_lshl_or_b32 v{o+4+q}, v{g+2*q+1}, 16, v{g+2*q}')
        for q in range(4):
            a(f'v_lshl_or_b32 v{o+q}, v{g+2*q+2}, 16, v{g+2*q+1}')
        a(f'ds_write_b128 v55, v[{o}:{o+3}] offset:{ch*KC_CH}')
        a(f'ds_write_b128 v55, v[{o+4}:{o+7}] offset:{ch*KC_CH + KC_O}')
    emit(a, pq)
    dma = dma_list(SRD1, V_D1, 3584, 0, 12, SL, 0, 'w1r1')
    dmas(a, dma, OPT.get('d1a', 4))
    stamp(a, 5)
    EST(a, 12)
    a.barrier()
    def aread(s_):
        base = 56 + s_ // 8; o = 32 * (s_ % 8)
        return [f'ds_read2_b32 a[{4*s_}:{4*s_+1}], v{base} offset0:{o} offset1:{o+1}',
                f'ds_read2_b32 a[{4*s_+2}:{4*s_+3}], v{base} offset0:{o+2} offset1:{o+3}']
    def bread(mu):
        k = mu + 3
        return [f'ds_read_b128 a[{128+4*k}:{131+4*k}], v60 offset:{128*(28-mu)}']
    for al in range(8): emit(a, aread(4 * al))
    if OPT.get('why'):
        a(f's_mov_b32 s99, 0')
        for bit, regs in ((1, [210]), (2, [SG + 4 * i + 2 for i in range(8)]), (4, [XG + 2 * i + 1 for i in range(8)])):
            tagcheck(a, regs, 2)
            a(f's_cmp_lg_u64 vcc, 0')
            a(f's_cselect_b32 s14, {bit}, 0')
            a(f's_or_b32 s99, s99, s14')
        a(f's_memtime s[72:73]')
    poll(a, 'poll0', pl, [210] + [SG + 4 * i + 2 for i in range(8)] + [XG + 2 * i + 1 for i in range(8)], preissued=True)
    stamp(a, 6)
    if OPT.get('why'):
        a(f's_lshl_b32 s99, s99, 8')
        a(f's_add_u32 s99, s99, s8')
        a(f's_add_u32 s70, s99, s68')
    if OPT.get('t1', 0) == 2: a(f'global_load_dword v227, v225, {sp(S_W1)}')
    if OPT.get('wt', 1) == 2:
        a(f's_lshl_b32 s6, s{S_PAR}, 1')
        a(f's_add_u32 s6, s6, {S_W1}') if False else None
        a(f'global_load_dword v226, v224, {sp(S_W1)}')
        a(f'global_load_dword v227, v224, {sp(S_W2)}')
    a(f'v_add_f32_dpp v208, v208, v208 quad_perm:[1,0,3,2] row_mask:0xf bank_mask:0xf')
    a(f'v_add_f32_dpp v209, v209, v209 quad_perm:[1,0,3,2] row_mask:0xf bank_mask:0xf')
    a(f'v_cvt_pk_bf16_f32 v208, v208, v209')
    for ch in range(2):
        for k in range(4):
            a(f'v_lshlrev_b32 v{64+8*ch+2*k}, 16, v{XG+8*ch+2*k}')
            a(f'v_and_b32 v{65+8*ch+2*k}, 0xffff0000, v{XG+8*ch+2*k}')
        if ch == 0:
            a(f'v_readlane_b32 s11, v208, 2')
            a(f'v_readlane_b32 s10, v208, 0')
    a(f's_lshl_b32 s13, s11, 16')
    a(f's_and_b32 s14, s11, 0xffff0000')
    a(f'v_add_f32_e64 v100, s13, 1.0')
    a(f'v_add_f32_e64 v101, s14, 1.0')
    a(f's_lshl_b32 s13, s10, 16')
    a(f's_and_b32 s14, s10, 0xffff0000')
    a(f'v_cvt_pk_bf16_f32 v101, v100, v101')
    a(f'v_mov_b32 v102, s13')
    a(f'v_mov_b32 v103, s14')
    for ch in range(2):
        for k in range(4):
            x = 64 + 8 * ch + 2 * k; h = 104 + 8 * ch + 2 * k; g = SG + 8 * k
            a(f'v_pk_fma_f32 v[{h}:{h+1}], v[{x}:{x+1}], v[{g}:{g+1}], v[{g+4}:{g+5}]')
        if ch == 0:
            a(f'v_lshlrev_b32 v100, 16, v101')
            a(f'v_and_b32 v101, 0xffff0000, v101')
    for ch in range(2):
        for k in range(4):
            h = 104 + 8 * ch + 2 * k
            a(f'v_pk_fma_f32 v[{h}:{h+1}], v[{h}:{h+1}], v[100:101], v[102:103] op_sel:[0,{ch},{ch}] op_sel_hi:[1,{ch},{ch}]')
        for q in range(4):
            a(f'v_cvt_pk_bf16_f32 v{120+4*ch+q}, v{104+8*ch+7-2*q}, v{104+8*ch+6-2*q}')
        a(f'ds_write_b128 v61, v[{120+4*ch}:{123+4*ch}] offset:{ch*UR_CH}')
        dmas(a, dma, OPT.get('d1b', 2))
    a.barrier()
    stamp(a, 7)
    for be in range(8): emit(a, bread(4 * be))
    if OPT.get('t1', 0) == 1: a(f'global_load_dword v227, v225, {sp(S_W1)}')
    ACC = 16
    sh = []
    sh.append(f's_lshl_b32 s13, s{S_DSKV}, 16')
    sh.append(f's_and_b32 s14, s{S_DSKV}, 0xffff0000')
    sh.append(f's_mul_i32 s6, s{S_W}, {Y_W}')
    sh.append(f's_add_u32 s6, s6, {L_Y}')
    sh.append(f'v_mul_u32_u24 v4, 80, v49')
    sh.append(f'v_lshl_add_u32 v4, v50, 4, v4')
    sh.append(f'v_add_u32 v4, s6, v4')
    BASE = 128
    for ch in range(2):
        for q in range(4):
            src = 120 + 4 * ch + q
            sh.append(f'v_lshlrev_b32 v14, 16, v{src}')
            sh.append(f'v_and_b32 v15, 0xffff0000, v{src}')
            sh.append(f'v_mul_f32 v{BASE+8*ch+7-2*q}, s{13+ch}, v14')
            sh.append(f'v_mul_f32 v{BASE+8*ch+6-2*q}, s{13+ch}, v15')
    sh.append(f'v_lshrrev_b32 v2, 1, v0')
    sh.append(f'v_mul_u32_u24 v2, 80, v2')
    sh.append(f'v_and_b32 v14, 1, v0')
    sh.append(f'v_lshl_add_u32 v2, v14, 5, v2')
    sh.append(f'v_add_u32 v2, {L_Y}, v2')
    sh.append(f's_mul_i32 s6, s{S_CW}, {2*X2S}')
    sh.append(f's_add_u32 s6, s6, {WS_X2T}')
    sh.append(f'v_lshl_add_u32 v8, v0, 4, s6')
    sh.append(f'v_add_u32 v9, {X2S}, v8')
    sh.append(f'v_min_u32 v144, 223, v0')
    sh.append(f'v_lshlrev_b32 v145, 3, v144')
    sh.append(f'v_add_u32 v145, {WS_MODG + 672*8}, v145')
    sh.append(f'v_and_b32 v146, 31, v1')
    sh.append(f's_lshl_b32 s6, s{S_FT}, 8')
    sh.append(f's_add_u32 s6, s6, {WS_MODG + 1120*8}')
    sh.append(f'v_lshl_add_u32 v147, v146, 3, s6')
    sh.append(f's_mul_i32 s6, s{S_W}, 224')
    sh.append(f's_add_u32 s6, s6, s{S_CW}')
    sh.append(f's_lshl_b32 s6, s6, 6')
    sh.append(f's_add_u32 s6, s6, {WS_FLAG1}')
    sh.append(f'v_mov_b32 v157, s6')
    sh.append(f'v_mov_b32 v239, s{S_TAG}')
    global PM
    PM = [f'global_load_dwordx2 v[148:149], v145, {sp(S_WS)} sc1',
          f'global_load_dwordx2 v[150:151], v145, {sp(S_WS)} offset:{224*8} sc1',
          f'global_load_dwordx2 v[152:153], v147, {sp(S_WS)} sc1',
          f'global_load_dwordx2 v[154:155], v156, {sp(S_WS)} sc1']
    sh.append(f's_lshl_b32 s6, s{S_CW}, 3')
    sh.append(f's_add_u32 s6, s6, {WS_MODG + 448*8}')
    sh.append(f'v_mov_b32 v156, s6')
    sh.extend(PM)
    started = set(); nm = 0; pend_w = []
    for r in range(4):
        rd = []
        if r > 0: a.wait(lgkm=0)
        if r == 3: a.barrier()
        if r < 3:
            for al in range(8): rd += aread(4 * al + r + 1)
            for be in range(8): rd += bread(4 * be - r - 1)
        for be in range(8):
            k = 4 * be - r + 3
            for al in range(8 - be):
                c = al + be; s_ = 4 * al + r
                acc = f'v[{ACC+4*c}:{ACC+4*c+3}]'
                a(f'v_mfma_f32_16x16x32_bf16 {acc}, a[{4*s_}:{4*s_+3}], a[{128+4*k}:{131+4*k}], ' + (acc if c in started else '0'))
                started.add(c); nm += 1
                if pend_w and nm >= pend_w[0][0]:
                    cc = pend_w.pop(0)[1]
                    a(f'ds_write_b128 v4, v[{ACC+4*cc}:{ACC+4*cc+3}] offset:{1280*cc}')
                elif nm % OPT.get('dmak', 8) == 0 and dma:
                    while True:
                        x = dma.pop(0); emit1(a, x)
                        if isinstance(x, tuple): break
                elif rd: emit1(a, rd.pop(0))
                else: fill(a, sh, 2)
                if r == 3 and al == 0: pend_w.append((nm + 6, c))
        assert not rd, (r, len(rd))
    assert nm == 144 and not dma, (len(sh), len(dma))
    emit(a, sh)
    for _, cc in pend_w:
        a(f'ds_write_b128 v4, v[{ACC+4*cc}:{ACC+4*cc+3}] offset:{1280*cc}')
    a.barrier()
    stamp(a, 8)
    for ch in range(2):
        for p in range(2):
            for q in range(2):
                YR = 160
                r = YR + 16 * ch + 8 * p + 4 * q
                a(f'ds_read_b128 v[{r}:{r+3}], v2 offset:{(2*ch+p)*Y_W + 16*q}')
    poll(a, 'pollm', PM, [149, 151, 153, 155], vt=14, preissued=True)
    a(f'v_lshlrev_b32 v10, 16, v154')
    a(f'v_and_b32 v11, 0xffff0000, v154')
    for ch in range(2):
        for q in range(4):
            r = YR + 16 * ch + 2 * q; b = BASE + 8 * ch + 2 * q
            a(f'v_pk_add_f32 v[{r}:{r+1}], v[{r}:{r+1}], v[{b}:{b+1}]')
        for q in range(4):
            r = YR + 16 * ch + 2 * q
            a(f'v_pk_add_f32 v[{r}:{r+1}], v[{r}:{r+1}], v[{r+8}:{r+9}]')
        for q in range(4):
            r = YR + 16 * ch + 2 * q; b = 64 + 8 * ch + 2 * q
            a(f'v_pk_fma_f32 v[{r}:{r+1}], v[{r}:{r+1}], v[10:11], v[{b}:{b+1}] op_sel:[0,{ch},0] op_sel_hi:[1,{ch},1]')
        for q in range(4):
            r = YR + 16 * ch + 2 * q
            a(f'v_cvt_pk_bf16_f32 v{96+4*ch+q}, v{r}, v{r+1}')
        a(f'global_store_dwordx4 v{8+ch}, v[{96+4*ch}:{99+4*ch}], {sp(S_WS)} sc1', tag='x2t')
    stamp(a, 9)

RAW, F32, SS, QQ, PC, XST = 16, 72, 184, 192, 200, 228
BC = 112
def w2dst(u, k): return ('a', (k * 2 + u) * 4)
def phase2(a):
    a.wait_vm_tag('w1r1')
    emit(a, tr_list(w1dst, (V_A0, V_A1), range(0, 12), 0, 'w1tr'))
    a(f'v_lshlrev_b32 v14, 16, v150')
    a(f'v_and_b32 v15, 0xffff0000, v150')
    a(f'v_pk_add_f32 v[14:15], v[14:15], 1.0 op_sel_hi:[1,0]')
    a(f'v_lshlrev_b32 v17, 16, v148')
    a(f'v_and_b32 v19, 0xffff0000, v148')
    a(f'v_cvt_pk_bf16_f32 v150, v14, v15')
    a(f'v_lshlrev_b32 v144, 4, v144')
    a(f'v_add_u32 v144, {L_PC}, v144')
    a(f'v_lshlrev_b32 v16, 16, v150')
    a(f'v_and_b32 v18, 0xffff0000, v150')
    a(f'v_lshlrev_b32 v14, 16, v152')
    a(f'v_and_b32 v15, 0xffff0000, v152')
    a(f'v_lshlrev_b32 v146, 3, v146')
    a(f'v_add_u32 v146, {L_GB}, v146')
    a(f's_mov_b32 s6, 0x3fb8aa3b')
    a(f's_mov_b32 s7, 0x3f317218')
    a(f'v_pk_mul_f32 v[16:17], v[16:17], s[6:7] op_sel_hi:[1,0]')
    a(f'v_pk_mul_f32 v[18:19], v[18:19], s[6:7] op_sel_hi:[1,0]')
    a(f'v_pk_mul_f32 v[14:15], v[14:15], s[6:7] op_sel:[0,1] op_sel_hi:[1,1]')
    a.wait_lg_tag('w1tr')
    d2 = dma_list(SRD1, V_D1, 3584, 12, 12, SL, 0, 'w1r2')
    dmas(a, d2, OPT.get('r2pre', 8))
    a.wait_vm_tag('x2t')
    emit(a, flag_ops(157, 239))
    stamp(a, 10)
    a(f'ds_write_b128 v144, v[16:19]')
    a(f'ds_write_b64 v146, v[14:15]')
    a.barrier()
    emit(a, d2)
    emit(a, dma_list(SRD1, V_D1, 3584, 24, 4, 8192, L_H2, 'w1r2'))
    a(f'v_min_u32 v4, 55, v1')
    a(f's_lshr_b32 s6, s{S_TT}, 3')
    a(f's_lshl_b32 s6, s6, 2')
    a(f's_add_u32 s6, s6, s{S_W}')
    a(f's_mul_i32 s6, s6, {56*64}')
    a(f's_add_u32 s6, s6, {WS_FLAG1}')
    a(f'v_lshl_add_u32 v12, v4, 6, s6')
    a(f'v_lshrrev_b32 v4, 3, v0')
    a(f'v_and_b32 v5, 7, v0')
    a(f'v_mul_u32_u24 v6, {X2S}, v4')
    a(f'v_lshl_add_u32 v6, v5, 4, v6')
    a(f's_lshl_b32 s6, s{S_TT}, 7')
    a(f's_add_u32 s6, s6, {WS_X2T}')
    a(f'v_add_u32 v6, s6, v6')
    a(f's_mul_i32 s7, s{S_FT}, {64*X2S}')
    a(f'v_add_u32 v7, s7, v6')
    a(f'v_bfe_u32 v8, v4, 1, 1')
    a(f'v_lshlrev_b32 v8, 2, v8')
    a(f'v_xor_b32 v8, v8, v5')
    a(f'v_lshlrev_b32 v8, 4, v8')
    a(f'v_lshl_add_u32 v8, v4, 7, v8')
    a(f'v_add_u32 v8, {L_H2}, v8')
    a(f'v_lshlrev_b32 v9, 3, v4')
    a(f'v_add_u32 v9, {L_PC}, v9')
    a(f'v_lshrrev_b32 v10, 5, v1')
    a(f'v_lshlrev_b32 v10, 8, v10')
    a(f'v_bfe_u32 v11, v1, 4, 1')
    a(f'v_lshl_add_u32 v10, v11, 4, v10')
    a(f'v_lshl_add_u32 v10, v5, 5, v10')
    a(f's_lshl_b32 s6, s{S_W}, 9')
    a(f's_add_u32 s6, s6, {L_PS}')
    a(f'v_add_u32 v10, s6, v10')
    a(f'v_lshlrev_b32 v11, 5, v5')
    a(f'v_add_u32 v11, {L_PS}, v11')
    for i in range(14):
        a(f'ds_read_b64 v[{PC+2*i}:{PC+2*i+1}], v9 offset:{256*i}')
    poll(a, 'poll1', [f'global_load_dword v16, v12, {sp(S_WS)} sc1'], [16])
    a(f's_barrier')
    stamp(a, 11)
    for i in range(14):
        a(f'global_load_dwordx4 v[{RAW+4*i}:{RAW+4*i+3}], v6, {sp(S_WS)} sc1')
        if i < 13: a(f'v_add_u32 v6, {32*X2S}, v6')
    a(f'global_load_dwordx4 v[{XST}:{XST+3}], v7, {sp(S_WS)} sc1')
    a(f'v_add_u32 v7, {32*X2S}, v7')
    a(f'global_load_dwordx4 v[{XST+4}:{XST+7}], v7, {sp(S_WS)} sc1')
    a.wait_vm_tag('w1r2')
    emit(a, tr_list(w1dst, (V_A0, V_A1), range(12, 24), 12, 'w1tr'))
    emit(a, tr_list(w1dst, (V_X0, V_X1), range(24, 28), 24))
    a(f's_lshl_b32 s7, s{S_CH}, 6')
    a(f'v_xor_b32 v{V_A0}, s7, v{V_A0}')
    a(f'v_xor_b32 v{V_A1}, s7, v{V_A1}')
    a(f's_mul_i32 s6, s{S_W}, {W2H}')
    a(f's_add_u32 s6, s6, {L_H2}')
    a(f'v_xor_b32 v2, s7, v{V_T0}')
    a(f'v_xor_b32 v3, s7, v{V_T1}')
    a(f'v_add_u32 v{V_X0}, s6, v2')
    a(f'v_add_u32 v{V_X1}, s6, v3')
    a(f'v_add_u32 v12, {L_H2}, v{V_T0}')
    a(f'v_add_u32 v13, {L_H2}, v{V_T1}')
    d1 = dma_list(SRD2, V_D2, 896, 0, 12, SL, 0, 'w2a')
    a.wait_lg_tag('w1tr')
    for i in range(14):
        for k in range(4):
            x = F32 + 8 * i + 2 * k
            a(f'v_lshlrev_b32 v{x}, 16, v{RAW+4*i+k}')
            a(f'v_and_b32 v{x+1}, 0xffff0000, v{RAW+4*i+k}')
        for k in range(4):
            x = F32 + 8 * i + 2 * k
            if i == 0:
                a(f'v_pk_mul_f32 v[{QQ+2*k}:{QQ+2*k+1}], v[{x}:{x+1}], v[{x}:{x+1}]')
            elif i == 1:
                a(f'v_pk_add_f32 v[{SS+2*k}:{SS+2*k+1}], v[{x}:{x+1}], v[{x-8}:{x-7}]')
                a(f'v_pk_fma_f32 v[{QQ+2*k}:{QQ+2*k+1}], v[{x}:{x+1}], v[{x}:{x+1}], v[{QQ+2*k}:{QQ+2*k+1}]')
            else:
                a(f'v_pk_add_f32 v[{SS+2*k}:{SS+2*k+1}], v[{x}:{x+1}], v[{SS+2*k}:{SS+2*k+1}]')
                a(f'v_pk_fma_f32 v[{QQ+2*k}:{QQ+2*k+1}], v[{x}:{x+1}], v[{x}:{x+1}], v[{QQ+2*k}:{QQ+2*k+1}]')
        if i >= 10: dmas(a, d1, 1)
    stamp(a, 12)
    for i in range(8): a(f'v_permlane32_swap_b32 v{SS+i}, v{QQ+i}')
    for k in range(4): a(f'v_pk_add_f32 v[{SS+2*k}:{SS+2*k+1}], v[{SS+2*k}:{SS+2*k+1}], v[{QQ+2*k}:{QQ+2*k+1}]')
    for i in range(4): a(f'v_permlane16_swap_b32 v{SS+i}, v{SS+4+i}')
    for k in range(2): a(f'v_pk_add_f32 v[{SS+2*k}:{SS+2*k+1}], v[{SS+2*k}:{SS+2*k+1}], v[{SS+4+2*k}:{SS+5+2*k}]')
    dmas(a, d1, 1)
    for i in range(4): a(f'v_add_f32_dpp v{SS+i}, v{SS+i}, v{SS+i} row_ror:8 row_mask:0xf bank_mask:0xf')
    a(f'ds_write_b128 v10, v[{SS}:{SS+3}]')
    dmas(a, d1, 2)
    a.barrier()
    T = RAW
    def P(w, j):
        r = T + 16 * w + j
        return r if r < F32 else SS + (r - F32)
    for w in range(4):
        for st_ in range(2):
            for q in range(2):
                r = P(w, 8 * st_ + 4 * q)
                a(f'ds_read_b128 v[{r}:{r+3}], v11 offset:{w*512 + st_*256 + q*16}')
    a(f's_cmp_lg_u32 s2, 0')
    a(f's_cbranch_scc1 L_nobump')
    st = a.state()
    a(f'v_mov_b32 v2, s{S_E}')
    a(f'v_mov_b32 v3, {WS_EPOCH}')
    a(f'global_store_dword v3, v2, {sp(S_WS)} sc1')
    a.label('L_nobump')
    a.set_state(st)
    for k in range(8):
        a(f'v_pk_add_f32 v[{T+2*k}:{T+2*k+1}], v[{T+2*k}:{T+2*k+1}], v[{P(1,2*k)}:{P(1,2*k)+1}]')
    for k in range(8):
        a(f'v_pk_add_f32 v[{T+32+2*k}:{T+33+2*k}], v[{T+32+2*k}:{T+33+2*k}], v[{P(3,2*k)}:{P(3,2*k)+1}]')
    for k in range(8):
        a(f'v_pk_add_f32 v[{T+2*k}:{T+2*k+1}], v[{T+2*k}:{T+2*k+1}], v[{T+32+2*k}:{T+33+2*k}]')
    a(f's_mov_b32 s6, 0x3b124925')
    a(f's_mov_b32 s7, 0x3727c5ac')
    for k in range(8):
        a(f'v_pk_mul_f32 v[{T+2*k}:{T+2*k+1}], v[{T+2*k}:{T+2*k+1}], s[6:7] op_sel_hi:[1,0]')
    for k in range(4):
        a(f'v_pk_fma_f32 v[{T+8+2*k}:{T+9+2*k}], v[{T+2*k}:{T+2*k+1}], v[{T+2*k}:{T+2*k+1}], v[{T+8+2*k}:{T+9+2*k}] neg_lo:[1,0,0] neg_hi:[1,0,0]')
    for k in range(4):
        a(f'v_pk_add_f32 v[{T+8+2*k}:{T+9+2*k}], v[{T+8+2*k}:{T+9+2*k}], s[6:7] op_sel:[0,1] op_sel_hi:[1,1]')
    for k in range(8): a(f'v_max_f32 v{T+8+k}, s7, v{T+8+k}')
    for k in range(8): a(f'v_rsq_f32 v{T+8+k}, v{T+8+k}')
    dmas(a, d1, 1)
    for k in range(4):
        a(f'v_pk_mul_f32 v[{T+2*k}:{T+2*k+1}], v[{T+2*k}:{T+2*k+1}], v[{T+8+2*k}:{T+9+2*k}] neg_lo:[1,0] neg_hi:[1,0]')
    stamp(a, 13)
    for i in range(14):
        o = 32 + 4 * (i % 4)
        for k in range(4):
            x = F32 + 8 * i + 2 * k
            a(f'v_pk_fma_f32 v[{x}:{x+1}], v[{x}:{x+1}], v[{T+8+2*k}:{T+9+2*k}], v[{T+2*k}:{T+2*k+1}]')
        for k in range(4):
            x = F32 + 8 * i + 2 * k
            a(f'v_pk_fma_f32 v[{x}:{x+1}], v[{x}:{x+1}], v[{PC+2*i}:{PC+2*i+1}], v[{PC+2*i}:{PC+2*i+1}] op_sel:[0,0,1] op_sel_hi:[1,0,1]')
        for k in range(4):
            x = F32 + 8 * i + 2 * k
            a(f'v_cvt_pk_bf16_f32 v{o+k}, v{x}, v{x+1}')
        a(f'ds_write_b128 v8, v[{o}:{o+3}] offset:{4096*i}')
        if i % 2 == 1: dmas(a, d1, 1)
    a.barrier()
    stamp(a, 14)
    TMP = 48
    def silu_ops(acc, ct, jt, o):
        L = []
        for e in range(-2, 18):
            if 0 <= e + 2 < 16: L.append(f'v_exp_f32 v{TMP+(e+2)%8}, -v{acc+e+2}')
            if 0 <= e - 1 < 16:
                L.append(f'v_mul_f32 v{TMP+(e-1)%8}, v{TMP+(e-1)%8}, v{acc+e-1}')
            if 0 <= e + 1 < 16: L.append(f'v_add_f32 v{TMP+(e+1)%8}, 1.0, v{TMP+(e+1)%8}')
            if 0 <= e < 16: L.append(f'v_rcp_f32 v{TMP+e%8}, v{TMP+e%8}')
            if 0 <= e - 2 < 16 and (e - 2) % 2 == 1:
                p = (e - 2) // 2
                L.append(f'v_cvt_pk_bf16_f32 v{o+p}, v{TMP+(e-3)%8}, v{TMP+(e-2)%8}')
                if p % 4 == 3:
                    q = p // 4
                    L.append((f'global_store_dwordx4 v{10+jt}, v[{o+4*q}:{o+4*q+3}], {sp(S_WS)} offset:{ct*2048 + q*1024} {"" if OPT.get("e2") else "sc1"}', f'hst{jt}'))
        return L
    def bread1(jt, ks):
        r = BC + 4 * ks
        return [(f'ds_read_b64_tr_b16 v[{r+2*sec}:{r+2*sec+1}], v{12+jt} offset:{ks*2048 + sec*1024}', 'b1') for sec in range(2)]
    tiles = [(0, 0), (1, 0), (0, 1), (1, 1)]
    PRE = 6
    for ks in range(PRE): emit(a, bread1(0, ks))
    ad = []
    ad.append(f's_mul_i32 s10, s{S_TT}, {224*1024}')
    ad.append(f's_lshl_b32 s7, s{S_FT}, 14')
    ad.append(f's_add_u32 s6, s10, s7')
    ad.append(f's_lshl_b32 s7, s{S_W}, 12')
    ad.append(f's_add_u32 s6, s6, s7')
    ad.append(f's_add_u32 s6, s6, {WS_H}')
    ad.append(f'v_lshl_add_u32 v10, v1, 4, s6')
    ad.append(f'v_add_u32 v11, {112*1024}, v10')
    ad.append(f's_lshl_b32 s6, s{S_CW}, 2')
    ad.append(f's_add_u32 s6, s6, s{S_W}')
    ad.append(f's_lshl_b32 s6, s6, 6')
    ad.append(f's_add_u32 s6, s6, {WS_FLAG2}')
    ad.append(f'v_mov_b32 v80, s6')
    ad.append(f'v_add_u32 v81, {F2S}, v80')
    ad.append(f's_mul_i32 s6, s{S_TT}, 28')
    ad.append(f's_mul_i32 s7, s{S_W}, 7')
    ad.append(f's_add_u32 s6, s6, s7')
    ad.append(f's_lshl_b32 s6, s6, 6')
    ad.append(f's_add_u32 s6, s6, {WS_FLAG2}')
    ad.append([f's_add_u32 s32, s{S_WS}, s6', f's_addc_u32 s33, s{S_WS+1}, 0'])
    ad.append([f's_add_u32 s34, s32, {F2S}', f's_addc_u32 s35, s33, 0'])
    ad.append(f's_mul_i32 s7, s{S_W}, {28*1024}')
    ad.append(f's_add_u32 s6, s10, s7')
    ad.append(f's_add_u32 s6, s6, {WS_H + 4096}')
    ad.append(f'v_lshl_add_u32 v84, v1, 4, s6')
    for k in range(1, 4): ad.append(f'v_add_u32 v{84+k}, {8192*k}, v84')
    dC = dma_list(SRD2, V_D2, 896, 12, 6, W2H, L_H2, 'w2c')
    if OPT.get('t2', 1):
        ad.append(f's_mul_i32 s6, s{S_W}, {448*896}')
        ad.append(f's_mul_i32 s7, s{S_LOC}, 5120')
        ad.append(f's_add_u32 s6, s6, s7')
        ad.append(f's_add_u32 s6, s6, {288*896}')
        ad.append(f'v_min_u32 v90, 39, v1')
        ad.append(f'v_lshl_add_u32 v90, v90, 7, s6')
        ad.append(f'global_load_dword v91, v90, {sp(S_W2)}')
    nb1 = 0
    silu = []
    for ti, (ct, jt) in enumerate(tiles):
        acc = 16 + 16 * (ti & 1)
        if ti > 0:
            pc, pj = tiles[ti - 1]
            silu = silu_ops(16 + 16 * ((ti - 1) & 1), pc, pj, 64 + 8 * ((ti - 1) & 1))
        for ks in range(28):
            A = (ct * 28 + ks) * 4; r = BC + 4 * ks
            if ti == 0 and ks % 2 == 0 and ks + 1 < 28:
                want = {f'v{BC+4*(ks+1)+3}'}
                idx = [i for i, (w, k, t) in enumerate(a.lgq) if w & want]
                if idx: a.wait(lgkm=len(a.lgq) - 1 - idx[-1])
            if ti == 3 and ks == 0:
                a.barrier()
            a(f'v_mfma_f32_32x32x16_bf16 v[{acc}:{acc+15}], a[{A}:{A+3}], v[{r}:{r+3}], ' + ('0' if ks == 0 else f'v[{acc}:{acc+15}]'))
            budget = 6
            if ti == 0:
                if ks + PRE < 28:
                    emit(a, bread1(0, ks + PRE))
                    if d1 and ks % 2 == 0: dmas(a, d1, 1)
                    else: fill(a, ad, 2)
                else: fill(a, ad, 6)
                continue
            if ti in (1, 2) and nb1 < 28:
                lim = ks if ti == 1 else 27
                rate = 1 if (ks < 3 or ti == 2 or ks % 2 == 0) else 0
                if rate and nb1 <= lim:
                    emit(a, bread1(1, nb1)); nb1 += 1; budget -= 4
            if dC and ti == 3 and (ks % 2 == 1 or ks < 3):
                n0 = a.count; dmas(a, dC, 1); budget -= a.count - n0
            if silu and ks >= 3: fill(a, silu, 1000 if ks == 27 else budget)
        assert not silu
    assert nb1 == 28 and not d1 and not dC and not ad
    a.wait_vm_tag('hst0')
    emit(a, flag_ops(80, 239))
    emit(a, silu_ops(32, 1, 1, 72))
    stamp(a, 15)

def spoll_issue(base):
    return [f's_load_dword s{18+k}, s[{base}:{base+1}], {64*k} glc' for k in range(7)]
def spoll_check(a, name, base):
    def chk():
        a(f's_xor_b32 s18, s18, s{S_TAG}')
        for k in range(1, 7):
            a(f's_xor_b32 s{18+k}, s{18+k}, s{S_TAG}')
            a(f's_or_b32 s18, s18, s{18+k}')
        a(f's_cbranch_scc0 L_{name}_done')
    a(f's_mov_b32 s8, 0')
    chk()
    st = a.state()
    a.label(f'L_{name}')
    a(f's_sleep {OPT.get("slp", 4)}')
    emit(a, spoll_issue(base))
    chk()
    a(f's_add_u32 s8, s8, 1')
    a(f's_cmp_lt_u32 s8, 0x40000')
    a(f's_cbranch_scc1 L_{name}')
    a.label(f'L_{name}_done')
    h = a.hist; a.set_state(st); a.hist = h

def phase3(a):
    def hload(jt, ks):
        return f'global_load_dwordx4 v[{BC+4*ks}:{BC+4*ks+3}], v{84+4*jt+ks//8}, {sp(S_WS)} offset:{(ks%8)*1024-4096} sc1'
    a.wait_vm_tag('w2a')
    emit(a, tr_list(w2dst, (V_A0, V_A1), range(0, 6), 0))
    a(f'ds_write_b128 v8, v[{XST}:{XST+3}] offset:{L_XS - L_H2}')
    a(f'ds_write_b128 v8, v[{XST+4}:{XST+7}] offset:{L_XS - L_H2 + 4096}')
    emit(a, spoll_issue(32))
    emit(a, tr_list(w2dst, (V_A0, V_A1), range(6, 10), 0))
    QST(a, 6)
    spoll_check(a, 'poll2', 32)
    PST(a, 4)
    PD = OPT.get('pd', 12)
    for ks in range(PD): a(hload(0, ks))
    QST(a, 7)
    t3 = tr_list(w2dst, (V_A0, V_A1), range(10, 12), 0) + [('W', 'w2c')] + tr_list(w2dst, (V_X0, V_X1), range(12, 18), 12)
    fill(a, t3, OPT.get('t3pre', 32))
    a.wait_vm_tag('hst1')
    QST(a, 8)
    emit(a, flag_ops(81, 239))
    dD = dma_list(SRD2, V_D2, 896, 18, 10, SL, 0, 'w2d')
    t4 = [('W', 'w2d')] + tr_list(w2dst, (V_A0, V_A1), range(18, 28), 18)
    PST(a, 0)
    sh = []
    for k in range(4): sh.append(f'v_add_u32 v{88+k}, {112*1024}, v{84+k}')
    for u in range(2):
        for v in range(2):
            sh.append(f's_xor_b32 s6, s{S_CH}, {u}')
            sh.append(f's_lshl_b32 s6, s6, 3')
            sh.append(f's_add_u32 s6, s6, s{S_W}')
            sh.append(f's_lshl_b32 s6, s6, 12')
            sh.append(f's_add_u32 s6, s6, {L_RED + v*16384}')
            sh.append(f'v_lshl_add_u32 v{4+2*u+v}, v1, 4, s6')
    sh.append(f's_lshl_b32 s6, s{S_W}, 14')
    sh.append(f'v_lshl_add_u32 v9, v1, 4, s6')
    sh.append(f's_lshl_b32 s7, s{S_CH}, 7')
    sh.append(f's_add_u32 s7, s7, {L_GB}')
    sh.append(f'v_lshrrev_b32 v14, 5, v1')
    sh.append(f'v_lshl_add_u32 v15, v14, 4, s7')
    sh.append(f's_lshl_b32 s7, s{S_PAR}, 6')
    sh.append(f'v_xor_b32 v94, s7, v{V_T0}')
    sh.append(f's_lshl_b32 s7, s{S_CH}, 12')
    sh.append(f's_add_u32 s7, s7, {L_XS}')
    sh.append(f'v_add_u32 v94, s7, v94')
    sh.append(f's_lshl_b32 s10, s{S_TT}, 6')
    sh.append(f's_lshl_b32 s7, s{S_PAR}, 5')
    sh.append(f's_add_u32 s10, s10, s7')
    sh.append(f's_mul_i32 s10, s10, 896')
    sh.append(f's_lshl_b32 s7, s{S_FT}, 7')
    sh.append(f's_add_u32 s10, s10, s7')
    sh.append(f's_lshl_b32 s7, s{S_CH}, 6')
    sh.append(f's_add_u32 s10, s10, s7')
    sh.append(f'v_and_b32 v95, 31, v1')
    sh.append(f'v_mul_u32_u24 v95, 896, v95')
    sh.append(f'v_lshl_add_u32 v95, v14, 4, v95')
    sh.append(f'v_add_u32 v95, s10, v95')
    def mf(u, v, ks):
        acc = 16 + 16 * (2 * u + v); k, A = w2dst(u, ks)
        a(f'v_mfma_f32_32x32x16_bf16 v[{acc}:{acc+15}], a[{A}:{A+3}], v[{BC+4*ks}:{BC+4*ks+3}], ' + ('0' if ks == 0 else f'v[{acc}:{acc+15}]'))
    for ks in range(28):
        if ks == 28 - PD - OPT.get('p1d', 4): emit(a, spoll_issue(34))
        if ks == 28 - PD:
            PST(a, 1)
            spoll_check(a, 'poll3', 34)
        for u in range(2):
            mf(u, 0, ks)
            if u == 1: a(hload(0, ks + PD) if ks + PD < 28 else hload(1, ks + PD - 28))
            n0 = a.count
            if dD: dmas(a, dD, 1)
            b = 5 - (a.count - n0)
            if t3: fill(a, t3, b)
            elif ks >= 14 and t4: fill(a, t4, 6)
            elif sh: fill(a, sh, b)
    assert not t4 and not sh and not t3 and not dD
    a.barrier()
    late = []
    for u in range(2):
        for q in range(4): late.append(f'ds_write_b128 v{4+2*u}, v[{16+32*u+4*q}:{19+32*u+4*q}] offset:{1024*q}')
    for g in range(4):
        late.append(f'ds_read_b128 v[{96+4*g}:{99+4*g}], v15 offset:{32*g}')
        late.append(f'ds_read_b64_tr_b16 v[{224+2*g}:{225+2*g}], v94 offset:{1024*g}')
    for g in range(4):
        for q in range(2):
            late.append(f'v_lshlrev_b32 v{16+4*g+2*q}, 16, v{224+2*g+q}')
            late.append(f'v_and_b32 v{17+4*g+2*q}, 0xffff0000, v{224+2*g+q}')
    for ks in range(28):
        for u in range(2):
            mf(u, 1, ks)
            if u == 1 and ks + PD < 28: a(hload(1, ks + PD))
            if ks >= 2: fill(a, late, 4)
    assert not late
    PST(a, 2)
    for u in (1, 0):
        for q in range(4): a(f'ds_write_b128 v{5+2*u}, v[{32+32*u+4*q}:{35+32*u+4*q}] offset:{1024*q}')
    a.barrier()
    R = 112
    for k in range(4):
        for q in range(4):
            a(f'ds_read_b128 v[{R+16*k+4*q}:{R+16*k+4*q+3}], v9 offset:{4096*k + 1024*q}')
    for p in range(8): a(f'v_pk_add_f32 v[{R+2*p}:{R+2*p+1}], v[{R+2*p}:{R+2*p+1}], v[{R+16+2*p}:{R+17+2*p}]')
    for p in range(8): a(f'v_pk_add_f32 v[{R+32+2*p}:{R+33+2*p}], v[{R+32+2*p}:{R+33+2*p}], v[{R+48+2*p}:{R+49+2*p}]')
    for p in range(8): a(f'v_pk_add_f32 v[{R+2*p}:{R+2*p+1}], v[{R+2*p}:{R+2*p+1}], v[{R+32+2*p}:{R+33+2*p}]')
    for p in range(8):
        a(f'v_pk_fma_f32 v[{R+2*p}:{R+2*p+1}], v[{R+2*p}:{R+2*p+1}], v[{96+2*p}:{97+2*p}], v[{16+2*p}:{17+2*p}]')
    for p in range(8):
        a(f'v_cvt_pk_bf16_f32 v{176+p}, v{R+2*p}, v{R+2*p+1}')
    for q in range(2):
        a(f'v_permlane32_swap_b32 v{176+4*q}, v{178+4*q}')
        a(f'v_permlane32_swap_b32 v{177+4*q}, v{179+4*q}')
    for q in range(2):
        a(f'global_store_dwordx4 v95, v[{176+4*q}:{179+4*q}], {sp(S_OUT)} offset:{32*q}')
    PST(a, 3)

def PST(a, k):
    if PROF and OPT.get('late'):
        a(f's_memtime s[{68+2*(k+1)}:{69+2*(k+1)}]')

def QST(a, k):
    if PROF and OPT.get('late') == 2:
        a(f's_memtime s[{68+2*k}:{69+2*k}]')

def build(prof=False):
    global PROF
    PROF = prof
    a = Asm()
    setup(a)
    stamp(a, 0)
    if OPT.get('dbgout'):
        a(f's_memrealtime s[98:99]')
        a(f's_mov_b32 s101, s98')
    a(f's_cmp_ge_u32 s{S_LOC}, 28')
    a(f's_cbranch_scc1 L_spare')
    st = a.state()
    phase1(a)
    phase2(a)
    phase3(a)
    stamps_out(a)
    a.label('L_end')
    a('s_endpgm')
    a.set_state(st)
    spare(a)
    a.label('L_codeend')
    hdr = f"""; @launch grid=(256,1,1) block=(256,1,1) lds={LDS_TOTAL}
.amdgcn_target "amdgcn-amd-amdhsa--gfx950"
.text
.globl {KN}_kernel
.p2align 8
.type {KN}_kernel,@function
{KN}_kernel:
"""
    ftr = f""".section .rodata,"a"
.p2align 6
.amdhsa_kernel {KN}_kernel
  .amdhsa_next_free_vgpr 512
  .amdhsa_next_free_sgpr 102
  .amdhsa_accum_offset 256
  .amdhsa_group_segment_fixed_size 0
  .amdhsa_kernarg_size 136
  .amdhsa_user_sgpr_count 2
  .amdhsa_user_sgpr_kernarg_segment_ptr 1
  .amdhsa_system_sgpr_workgroup_id_x 1
.end_amdhsa_kernel
"""
    sys.stderr.write(f'instructions {a.count} nop states {a.nops}\n')
    return hdr + a.text() + ftr

if __name__ == '__main__':
    ap = argparse.ArgumentParser()
    ap.add_argument('out'); ap.add_argument('--prof', action='store_true'); ap.add_argument('-o', action='append', default=[])
    args = ap.parse_args()
    for kv in args.o:
        k, v = kv.split('='); OPT[k] = int(v)
    t = build(args.prof)
    if OPT.get('align', 1):
        import align
        t, w_, n_ = align.align(t)
        sys.stderr.write(f'aligned: widened {w_} nops {n_}\n')
    open(args.out, 'w').write(t)
```
